```python
import torch

def _softmax(x, axis=-1):
    return torch.softmax(x, dim=axis)
def _gelu(x):
    return torch.nn.functional.gelu(x, approximate="tanh")
def _silu(x):
    return torch.nn.functional.silu(x)
def _sigmoid(x):
    return torch.sigmoid(x)
def _layernorm(x, axis=-1, eps=1e-5):
    m = x.mean(dim=axis, keepdim=True)
    v = x.var(dim=axis, keepdim=True, unbiased=False)
    return (x - m) / torch.sqrt(v + eps)
def _scatter_add(tgt, idx, src, axis=0):
    return tgt.clone().index_add_(axis, idx, src)
def _segment_sum(src, seg, n):
    out = torch.zeros((n,) + src.shape[1:], dtype=src.dtype)
    return out.index_add_(0, seg, src)
def _pad(x, pw):
    flat = tuple(v for pair in reversed(pw) for v in pair)
    return torch.nn.functional.pad(x, flat)

kernel_name = 'recurrent_scan__sliding_block__dense_activation_squared_relu__prompt'

def setup_inputs():

    _w = (lambda a: (lambda t: t.to(torch.bfloat16) if t.is_floating_point() else t)(torch.as_tensor(a)))
    def _A_setup():
        B, S, D = 1, 2048, 1024
        return {
            "x": _w((lambda *s: torch.randn(*s, dtype=torch.bfloat16) * 0.05)(B, S, D)),
            "wqkv": _w((lambda *s: torch.randn(*s, dtype=torch.bfloat16) * 0.05)(D, 3 * D)),
            "wo": _w((lambda *s: torch.randn(*s, dtype=torch.bfloat16) * 0.05)(D, D)),
        }
    _A_in = _A_setup()

    def _B_setup():
        B, S, D, F = 1, 2048, 1024, 3584
        return {
            "x": _w((lambda *s: torch.randn(*s, dtype=torch.bfloat16) * 0.05)(B, S, D)),
            "w1": _w((lambda *s: torch.randn(*s, dtype=torch.bfloat16) * 0.05)(D, F)),
            "b1": _w((lambda *s: torch.randn(*s, dtype=torch.bfloat16) * 0.4)(F)),
            "w2": _w((lambda *s: torch.randn(*s, dtype=torch.bfloat16) * 0.05)(F, D)),
            "b2": _w((lambda *s: torch.randn(*s, dtype=torch.bfloat16) * 3.2)(D)),
        }
    _B_in = _B_setup()

    return {
        "A_x": _A_in["x"],
        "A_wqkv": _A_in["wqkv"],
        "A_wo": _A_in["wo"],
        "B_x": _B_in["x"],
        "B_w1": _B_in["w1"],
        "B_b1": _B_in["b1"],
        "B_w2": _B_in["w2"],
        "B_b2": _B_in["b2"],
    }

def reference(A_x, A_wqkv, A_wo, B_x, B_w1, B_b1, B_w2, B_b2):
    def _A_ref(x, wqkv, wo):
        B, S, D = x.shape
        H = 32; Dh = D // H; W = 256
        qkv = (lambda x, *d: x.permute(*d))((x @ wqkv).reshape(B, S, 3, H, Dh), 2, 0, 3, 1, 4)
        q, k, v = qkv[0], qkv[1], qkv[2]
        scores = torch.einsum("bhqd,bhkd->bhqk", q, k) * (Dh ** -0.5)
        idx = torch.arange(S)
        mask = (idx[:, None] - idx[None, :] >= 0) & (idx[:, None] - idx[None, :] < W)
        scores = torch.where(mask[None, None], scores, -1e9)
        p = _softmax(scores, axis=-1)
        o = torch.einsum("bhqk,bhkd->bhqd", p, v)
        return (lambda x, *d: x.permute(*d))(o, 0, 2, 1, 3).reshape(B, S, D) @ wo

    def _B_ref(x, w1, b1, w2, b2):
        h = torch.einsum("bsd,df->bsf", x, w1) + b1
        zero = torch.zeros_like(h)
        r = torch.where(h > zero, h, zero)
        h = r * r
        out = torch.einsum("bsf,fd->bsd", h, w2) + b2
        return out

    x = A_x
    xn = _layernorm(x, axis=-1)
    s = _A_ref(xn, A_wqkv, A_wo)
    g = _silu(_B_ref(xn, B_w1, B_b1, B_w2, B_b2))
    return x + s * g
```

```python
class Asm:
    def __init__(self):
        self.lines = []
    def __call__(self, s):
        self.lines.append('  ' + s)
    def label(self, l):
        self.lines.append(l + ':')
    def raw(self, s):
        self.lines.append(s)
    def c(self, s):
        self.lines.append('  ; ' + s)
    def text(self):
        return '\n'.join(self.lines) + '\n'

def vr(b, n=1):
    return 'v%d' % b if n == 1 else 'v[%d:%d]' % (b, b + n - 1)
def ar(b, n=1):
    return 'a%d' % b if n == 1 else 'a[%d:%d]' % (b, b + n - 1)
def sr(b, n=1):
    return 's%d' % b if n == 1 else 's[%d:%d]' % (b, b + n - 1)

def kernel_begin(a, name):
    a.raw('.globl %s' % name)
    a.raw('.p2align 8')
    a.raw('.type %s,@function' % name)
    a.label(name)

def kd(name, vgpr, accum, sgpr=102):
    return '''.p2align 6
.amdhsa_kernel %s
  .amdhsa_next_free_vgpr %d
  .amdhsa_next_free_sgpr %d
  .amdhsa_accum_offset %d
  .amdhsa_group_segment_fixed_size 0
  .amdhsa_kernarg_size 88
  .amdhsa_user_sgpr_count 2
  .amdhsa_user_sgpr_kernarg_segment_ptr 1
  .amdhsa_system_sgpr_workgroup_id_x 1
.end_amdhsa_kernel
''' % (name, vgpr, sgpr, accum)

def srd(a, d, base_lo, base_hi, nrec):
    a('s_mov_b32 s%d, s%d' % (d, base_lo))
    a('s_and_b32 s%d, s%d, 0xffff' % (d + 1, base_hi))
    a('s_mov_b32 s%d, %s' % (d + 2, nrec if isinstance(nrec, str) else hex(nrec)))
    a('s_mov_b32 s%d, 0x20000' % (d + 3))
```

```python
import sys
sys.path.insert(0, 'dev')
from asmlib import *

OPT = set(x[2:] for x in sys.argv if x.startswith('--'))
MB = 1 << 20
WS_XN = 0
WS_QK = 4 * MB
WS_VT = 12 * MB
WS_HO = 16 * MB
HO_MG = 144 * 4096
WS_SIZE = 268435456
QSCALE = 0x3e8293ee
import struct, math
def f2u(f): return struct.unpack('<I', struct.pack('<f', f))[0]
QSCALE = f2u(math.log2(math.e) / math.sqrt(32.0))

KA_X, KA_WQKV, KA_WO, KA_BX, KA_W1, KA_B1, KA_W2, KA_B2, KA_OUT, KA_DBG, KA_WS = [8 * i for i in range(11)]

def xlane_sum_g(a, v, t):
    a('v_mov_b32 v%d, v%d' % (t, v))
    a('s_nop 1')
    a('v_permlane16_swap_b32 v%d, v%d' % (v, t))
    a('s_nop 1')
    a('v_add_f32 v%d, v%d, v%d' % (v, v, t))
    a('v_mov_b32 v%d, v%d' % (t, v))
    a('s_nop 1')
    a('v_permlane32_swap_b32 v%d, v%d' % (v, t))
    a('s_nop 1')
    a('v_add_f32 v%d, v%d, v%d' % (v, v, t))

def bf16r(a, v):
    a('v_cvt_pk_bf16_f32 v%d, v%d, v%d' % (v, v, v))
    a('v_lshlrev_b32 v%d, 16, v%d' % (v, v))

def gen_ln(a):
    name = 'ln_kernel'
    kernel_begin(a, name)
    a('s_cmp_ge_u32 s2, 128')
    a('s_cbranch_scc1 LN_end')
    a('s_load_dwordx2 s[4:5], s[0:1], %d' % KA_X)
    a('s_load_dwordx2 s[6:7], s[0:1], %d' % KA_WS)
    a('v_and_b32 v1, 15, v0')
    a('v_bfe_u32 v2, v0, 4, 2')
    a('v_lshrrev_b32 v3, 6, v0')
    a('v_lshlrev_b32 v4, 11, v1')
    a('v_lshl_add_u32 v4, v2, 4, v4')
    a('v_lshl_add_u32 v4, v3, 8, v4')
    a('s_lshl_b32 s3, s2, 15')
    a('s_waitcnt lgkmcnt(0)')
    srd(a, 8, 4, 5, 2048 * 1024 * 2)
    srd(a, 12, 6, 7, 4 * MB)
    for e in range(4):
        a('buffer_load_dwordx4 v[%d:%d], v4, s[8:11], s3 offen offset:%d' % (8 + 4 * e, 11 + 4 * e, e * 64))
    a('v_and_b32 v5, 63, v0')
    a('v_lshlrev_b32 v5, 4, v5')
    a('v_lshl_add_u32 v5, v3, 14, v5')
    a('s_lshr_b32 s16, s2, 2')
    a('s_lshl_b32 s16, s16, 17')
    a('s_and_b32 s17, s2, 3')
    a('s_lshl_b32 s17, s17, 10')
    a('s_add_u32 s16, s16, s17')
    a('s_waitcnt vmcnt(0)')
    for d in range(16):
        a('v_lshlrev_b32 v%d, 16, v%d' % (32 + 2 * d, 8 + d))
        a('v_and_b32 v%d, 0xffff0000, v%d' % (33 + 2 * d, 8 + d))
    a('v_pk_add_f32 v[24:25], v[32:33], v[34:35]')
    a('v_pk_add_f32 v[26:27], v[36:37], v[38:39]')
    for d in range(2, 8):
        a('v_pk_add_f32 v[24:25], v[24:25], v[%d:%d]' % (32 + 4 * d, 33 + 4 * d))
        a('v_pk_add_f32 v[26:27], v[26:27], v[%d:%d]' % (34 + 4 * d, 35 + 4 * d))
    a('v_pk_add_f32 v[24:25], v[24:25], v[26:27]')
    a('v_add_f32 v24, v24, v25')
    xlane_sum_g(a, 24, 25)
    a('v_mul_f32 v24, 0x%x, v24' % f2u(1.0 / 128))
    a('v_mov_b32 v25, v24')
    a('v_mov_b32 v26, 0')
    a('v_mov_b32 v27, 0')
    for d in range(16):
        a('v_pk_add_f32 v[28:29], v[%d:%d], v[24:25] neg_lo:[0,1] neg_hi:[0,1]' % (32 + 2 * d, 33 + 2 * d))
        a('v_pk_fma_f32 v[26:27], v[28:29], v[28:29], v[26:27]')
    a('v_add_f32 v25, v26, v27')
    xlane_sum_g(a, 25, 26)
    a('v_lshlrev_b32 v6, 3, v1')
    a('v_lshl_add_u32 v7, v3, 7, v6')
    a('ds_write_b64 v7, v[24:25]')
    a('s_waitcnt lgkmcnt(0)')
    a('s_barrier')
    for w in range(8):
        a('ds_read_b64 v[%d:%d], v6 offset:%d' % (8 + 2 * w, 9 + 2 * w, w * 128))
    a('s_waitcnt lgkmcnt(0)')
    a('v_add_f32 v24, v8, v10')
    a('v_add_f32 v25, v9, v11')
    for w in range(2, 8):
        a('v_add_f32 v24, v24, v%d' % (8 + 2 * w))
        a('v_add_f32 v25, v25, v%d' % (9 + 2 * w))
    a('v_mul_f32 v24, 0.125, v24' if False else 'v_mul_f32 v24, 0x3e000000, v24')
    a('v_mov_b32 v26, 0')
    for w in range(8):
        a('v_sub_f32 v27, v%d, v24' % (8 + 2 * w))
        a('v_fmac_f32 v26, v27, v27')
    a('v_mov_b32 v27, 0x43000000')
    a('v_fmac_f32 v25, v26, v27')
    a('v_mul_f32 v25, 0x%x, v25' % f2u(1.0 / 1024))
    bf16r(a, 24)
    bf16r(a, 25)
    a('v_add_f32 v25, 0x%x, v25' % f2u(1e-5))
    bf16r(a, 25)
    a('v_sqrt_f32 v25, v25')
    a('s_nop 0')
    bf16r(a, 25)
    a('v_rcp_f32 v26, v25')
    a('v_mov_b32 v25, v24')
    a('v_mov_b32 v27, v26')
    for d in range(16):
        x0 = 32 + 2 * d
        a('v_pk_add_f32 v[%d:%d], v[%d:%d], v[24:25] neg_lo:[0,1] neg_hi:[0,1]' % (x0, x0 + 1, x0, x0 + 1))
        a('v_cvt_pk_bf16_f32 v28, v%d, v%d' % (x0, x0 + 1))
        a('v_lshlrev_b32 v%d, 16, v28' % x0)
        a('v_and_b32 v%d, 0xffff0000, v28' % (x0 + 1))
        a('v_pk_mul_f32 v[%d:%d], v[%d:%d], v[26:27]' % (x0, x0 + 1, x0, x0 + 1))
        a('v_cvt_pk_bf16_f32 v%d, v%d, v%d' % (8 + d, x0, x0 + 1))
    for e in range(4):
        a('s_add_u32 s17, s16, %d' % (e * 4096))
        a('buffer_store_dwordx4 v[%d:%d], v5, s[12:15], s17 offen' % (8 + 4 * e, 11 + 4 * e))
    a.label('LN_end')
    a('s_endpgm')
    return name, kd(name, 64, 64), (128, 512, 1024)

def gen_gemm1(a, stamps=False):
    name = 'gemm1_kernel'
    NS = 5; DA = 8
    kernel_begin(a, name)
    a('s_cmp_ge_u32 s2, 256')
    a('s_cbranch_scc1 G1_end')
    a('s_load_dwordx2 s[4:5], s[0:1], %d' % KA_WQKV)
    a('s_load_dwordx2 s[6:7], s[0:1], %d' % KA_W1)
    a('s_load_dwordx2 s[8:9], s[0:1], %d' % KA_B1)
    a('s_load_dwordx2 s[10:11], s[0:1], %d' % KA_WS)
    if stamps:
        a('s_memrealtime s[90:91]')
        a('s_memtime s[92:93]')
    a('v_mov_b32 v255, v0')
    a('v_lshrrev_b32 v254, 6, v0')
    a('s_nop 0')
    a('v_readfirstlane_b32 s40, v254')
    a('v_and_b32 v253, 63, v255')
    a('s_and_b32 s41, s2, 7')
    a('s_lshr_b32 s42, s2, 3')
    a('s_and_b32 s43, s42, 7')
    a('s_lshr_b32 s44, s42, 3')
    a('s_and_b32 s45, s44, 1')
    a('s_lshl_b32 s41, s41, 1')
    a('s_add_u32 s45, s45, s41')
    a('s_lshl_b32 s46, s43, 2')
    a('s_add_u32 s46, s46, s40')
    a('s_cmp_ge_u32 s44, 2')
    a('s_cbranch_scc1 G1_w1')
    gemm1_variant(a, 'qkv', NS, DA, stamps)
    a.label('G1_w1')
    gemm1_variant(a, 'w1', NS, DA, stamps)
    a.label('G1_end')
    a('s_endpgm')
    return name, kd(name, 512, 256), (256, 256, NS * 28672)

def gemm1_variant(a, var, NS, DA, stamps):
    isw1 = var == 'w1'
    NT = 14 if isw1 else 12
    LD = 7168 if isw1 else 6144
    SLAB = 7168 if isw1 else 6144
    STAGE = 4 * SLAB
    ND = 7 if isw1 else 6
    L = 'G1%s_' % var
    V_RD = 224
    V_DE, V_DO, V_DS = 230, 231, 232
    V_A = 233
    T0, T1, T2, T3 = 234, 235, 236, 237
    V_LANE = 253
    def bfrag(t): return 4 * t
    def afrag(slot, i): return 64 + 16 * slot + 4 * i
    def swapped(t):
        return isw1 or t < 8
    def acc(i, t):
        if swapped(t):
            return (i * NT + t) * 4 if isw1 else (i * 8 + t) * 4
        return 128 + ((t - 8) * 4 + i) * 4
    S_WSRD, S_ASRD, S_OSRD, S_BSRD = 12, 16, 20, 24
    S_W, S_J, S_MG = 40, 45, 46
    S_BOFF, S_BOFF2, S_AOFF, S_T, S_RDELTA, S_RPOS, S_CNT = 50, 51, 52, 53, 54, 55, 56
    S_SCALE = 58
    a.c('--- variant %s' % var)
    a('v_lshrrev_b32 v%d, 4, v%d' % (T0, V_LANE))
    a('v_bfe_u32 v%d, v%d, 2, 2' % (T1, V_LANE))
    a('v_and_b32 v%d, 1, v%d' % (T2, T0))
    a('v_lshl_add_u32 v%d, v%d, 2, v%d' % (T2, T2, T1))
    a('v_and_b32 v%d, 6, v%d' % (T3, T2))
    a('v_bfe_u32 v%d, v%d, 1, 1' % (T1, V_LANE))
    a('v_or_b32 v%d, v%d, v%d' % (T3, T3, T1))
    a('v_lshrrev_b32 v%d, 1, v%d' % (T0, T0))
    a('v_lshlrev_b32 v%d, 10, v%d' % (T0, T0))
    a('v_lshl_add_u32 v%d, v%d, 7, v%d' % (T0, T2, T0))
    a('v_and_b32 v%d, 1, v%d' % (T1, V_LANE))
    a('v_lshl_add_u32 v%d, v%d, 3, v%d' % (T0, T1, T0))
    for b in range(4):
        a('v_xor_b32 v%d, %d, v%d' % (T1, 2 * b, T3))
        a('v_lshl_add_u32 v%d, v%d, 4, v%d' % (V_RD + b, T1, T0))
    if isw1:
        a('v_lshrrev_b32 v%d, 2, v%d' % (T0, V_LANE))
        a('v_lshlrev_b32 v%d, 6, v%d' % (T0, T0))
        a('v_and_b32 v%d, 1, v%d' % (T1, V_LANE))
        a('v_lshl_add_u32 v%d, v%d, 3, v%d' % (T0, T1, T0))
        a('v_add_u32 v%d, 6144, v%d' % (T0, T0))
        a('v_bfe_u32 v%d, v%d, 4, 1' % (T1, V_LANE))
        a('v_lshlrev_b32 v%d, 1, v%d' % (T1, T1))
        a('v_bfe_u32 v%d, v%d, 1, 1' % (T2, V_LANE))
        a('v_or_b32 v%d, v%d, v%d' % (T1, T1, T2))
        for b in range(2):
            a('v_xor_b32 v%d, %d, v%d' % (T2, 2 * b, T1))
            a('v_lshl_add_u32 v%d, v%d, 4, v%d' % (V_RD + 4 + b, T2, T0))
    a('s_lshr_b32 s60, s%d, 1' % S_W)
    a('s_lshl_b32 s60, s60, 5')
    a('s_and_b32 s61, s%d, 1' % S_W)
    a('s_lshl_b32 s61, s61, 2')
    a('s_add_u32 s60, s60, s61')
    a('s_mov_b32 s61, %d' % LD)
    a('v_lshrrev_b32 v%d, 3, v%d' % (T0, V_LANE))
    a('v_and_b32 v%d, 6, v%d' % (T1, T0))
    a('v_and_b32 v%d, 7, v%d' % (T2, V_LANE))
    a('v_xor_b32 v%d, v%d, v%d' % (T1, T1, T2))
    a('v_lshrrev_b32 v%d, 2, v%d' % (T2, T0))
    a('v_and_b32 v%d, 3, v%d' % (T0, T0))
    a('v_lshl_add_u32 v%d, v%d, 3, v%d' % (T0, T2, T0))
    a('v_add_u32 v%d, s60, v%d' % (T0, T0))
    a('v_mul_lo_u32 v%d, v%d, s61' % (T0, T0))
    a('v_lshl_add_u32 v%d, v%d, 4, v%d' % (V_DE, T1, T0))
    if isw1:
        a('s_and_b32 s62, s%d, 1' % S_J)
        a('s_lshl_b32 s63, s62, 6')
        a('s_xor_b32 s62, s62, 1')
        a('s_mul_i32 s62, s62, 384')
        a('v_add_u32 v%d, s63, v%d' % (V_DE, V_DE))
        a('v_lshrrev_b32 v%d, 4, v%d' % (T0, V_LANE))
        a('v_and_b32 v%d, 1, v%d' % (T1, T0))
        a('v_lshlrev_b32 v%d, 1, v%d' % (T1, T1))
        a('v_and_b32 v%d, 3, v%d' % (T2, V_LANE))
        a('v_xor_b32 v%d, v%d, v%d' % (T1, T1, T2))
        a('v_bfe_u32 v%d, v%d, 2, 2' % (T2, V_LANE))
        a('v_lshl_add_u32 v%d, v%d, 3, v%d' % (T0, T0, T2))
        a('v_add_u32 v%d, s60, v%d' % (T0, T0))
        a('v_mul_lo_u32 v%d, v%d, s61' % (T0, T0))
        a('v_lshl_add_u32 v%d, v%d, 4, v%d' % (V_DS, T1, T0))
        a('v_add_u32 v%d, s62, v%d' % (V_DS, V_DS))
    a('v_add_u32 v%d, %d, v%d' % (V_DO, 16 * LD, V_DE))
    a('v_lshlrev_b32 v%d, 4, v%d' % (V_A, V_LANE))
    if isw1:
        a('s_mul_i32 s%d, s%d, 448' % (S_BOFF, S_J))
    else:
        a('s_lshl_b32 s%d, s%d, 8' % (S_BOFF, S_J))
        a('s_lshl_b32 s%d, s%d, 7' % (S_BOFF2, S_J))
        a('s_add_u32 s%d, s%d, 4096' % (S_BOFF2, S_BOFF2))
    a('s_mov_b32 s%d, 0' % S_AOFF)
    a('s_mul_i32 s%d, s%d, %d' % (S_T, S_W, SLAB))
    a('s_waitcnt lgkmcnt(0)')
    if isw1:
        srd(a, S_WSRD, 6, 7, 1024 * LD)
        srd(a, S_BSRD, 8, 9, 3584 * 2)
    else:
        srd(a, S_WSRD, 4, 5, 1024 * LD)
    a('s_lshl_b32 s60, s%d, 17' % S_MG)
    a('s_add_u32 s62, s10, s60')
    a('s_addc_u32 s63, s11, 0')
    srd(a, S_ASRD, 62, 63, 131072)
    srd(a, S_OSRD, 10, 11, 34 * MB)

    if isw1:
        pieces = [(V_DE, S_BOFF, 0, 0), (V_DO, S_BOFF, 0, 1024), (V_DE, S_BOFF, 128, 2048), (V_DO, S_BOFF, 128, 3072),
                  (V_DE, S_BOFF, 256, 4096), (V_DO, S_BOFF, 256, 5120), (V_DS, S_BOFF, 0, 6144)]
    else:
        pieces = [(V_DE, S_BOFF, 0, 0), (V_DO, S_BOFF, 0, 1024), (V_DE, S_BOFF, 128, 2048), (V_DO, S_BOFF, 128, 3072),
                  (V_DE, S_BOFF2, 0, 4096), (V_DO, S_BOFF2, 0, 5120)]
    n_first = (ND + 1) // 2
    def m0_set(p):
        v, s, imm, lo = pieces[p]
        return 's_add_u32 m0, s%d, %d' % (S_T, lo - imm)
    def dma(p):
        v, s, imm, lo = pieces[p]
        return 'buffer_load_dwordx4 v%d, s[%d:%d], s%d offen offset:%d lds' % (v, S_WSRD, S_WSRD + 3, s, imm)
    def aload(slot, i):
        b = afrag(slot, i)
        return 'buffer_load_dwordx4 a[%d:%d], v%d, s[%d:%d], s%d offen offset:%d' % (b, b + 3, V_A, S_ASRD, S_ASRD + 3, S_AOFF, i * 1024)
    def adv_a():
        return ['s_add_u32 s%d, s%d, 4096' % (S_AOFF, S_AOFF)]
    def adv_dma():
        r = ['s_add_u32 s%d, s%d, %d' % (S_BOFF, S_BOFF, 64 * LD)]
        if not isw1:
            r.append('s_add_u32 s%d, s%d, %d' % (S_BOFF2, S_BOFF2, 64 * LD))
        r += ['s_add_u32 s%d, s%d, %d' % (S_T, S_T, STAGE),
              's_cmp_ge_u32 s%d, %d' % (S_T, NS * STAGE),
              's_cselect_b32 s60, %d, 0' % (NS * STAGE),
              's_sub_u32 s%d, s%d, s60' % (S_T, S_T)]
        return r
    def rd(t, s, q):
        b = bfrag(t) + 2 * s
        if t < 12:
            v = V_RD + (t & 3); off = (t >> 2) * 2048
        else:
            v = V_RD + 4 + (t - 12); off = 0
        off += (2 * q + s) * SLAB
        return 'ds_read_b64_tr_b16 a[%d:%d], v%d offset:%d' % (b, b + 1, v, off)

    if stamps: a('s_memtime s[70:71]')
    if isw1:
        a('v_lshrrev_b32 v%d, 4, v%d' % (T0, V_LANE))
        a('v_lshlrev_b32 v%d, 3, v%d' % (T0, T0))
        a('s_and_b32 s62, s%d, 1' % S_J)
        a('s_lshl_b32 s63, s62, 6')
        a('s_xor_b32 s62, s62, 1')
        a('s_mul_i32 s62, s62, 384')
        a('s_add_u32 s64, s%d, s63' % S_BOFF)
        a('s_add_u32 s65, s%d, s62' % S_BOFF)
        for t in range(NT):
            d = acc(3, t) + 2
            a('buffer_load_dwordx2 v[%d:%d], v%d, s[%d:%d], s%d offen offset:%d' %
              (d, d + 1, T0, S_BSRD, S_BSRD + 3, 64 if t < 12 else 65, (t * 32) if t < 12 else (t - 12) * 32))
    for vs in range(-7, -1):
        for i in range(4):
            a(aload((vs + 7) % DA, i))
        for x in adv_a(): a(x)
        odd = vs % 2 != 0
        ps = range(0, n_first) if odd else range(n_first, ND)
        for p in ps:
            a(m0_set(p)); a('s_nop 0'); a(dma(p))
        if not odd:
            for x in adv_dma(): a(x)
    nv = 6 * 4 + 3 * ND
    if stamps: a('s_memtime s[72:73]')
    if isw1:
        a('s_waitcnt vmcnt(%d)' % nv)
        for t in range(NT):
            d = acc(3, t)
            a('v_lshlrev_b32 v%d, 16, v%d' % (d, d + 2))
            a('v_and_b32 v%d, 0xffff0000, v%d' % (d + 1, d + 2))
            a('v_lshlrev_b32 v%d, 16, v%d' % (d + 2, d + 3))
            a('v_and_b32 v%d, 0xffff0000, v%d' % (d + 3, d + 3))
            for i in range(3):
                e = acc(i, t)
                a('v_pk_mov_b32 v[%d:%d], v[%d:%d], v[%d:%d] op_sel:[0,1]' % (e, e + 1, d, d + 1, d, d + 1))
                a('v_pk_mov_b32 v[%d:%d], v[%d:%d], v[%d:%d] op_sel:[0,1]' % (e + 2, e + 3, d + 2, d + 3, d + 2, d + 3))
    else:
        for r in range(0, 16 * NT, 2):
            a('v_pk_mov_b32 v[%d:%d], 0, 0' % (r, r + 1))
        a('s_cmp_lt_u32 s%d, 8' % S_J)
        a('s_cselect_b32 s%d, 0x%x, 1.0' % (S_SCALE, QSCALE))
        a('s_mov_b32 s%d, s%d' % (S_SCALE + 1, S_SCALE))
    NW = 16 + 2 * ND
    if stamps: a('s_memtime s[74:75]')
    a('s_waitcnt vmcnt(%d)' % NW)
    if stamps: a('s_memtime s[76:77]')
    a('s_barrier')
    if stamps:
        a('s_memtime s[94:95]')
    for t in range(NT - 1):
        a(rd(t, 0, 0)); a(rd(t, 1, 0))
        if t == 6:
            a('s_waitcnt lgkmcnt(4)')
    for i in range(4):
        a(aload(6, i))
    for x in adv_a(): a(x)
    for p in range(n_first):
        a(m0_set(p)); a('s_nop 0'); a(dma(p))
    a('s_mov_b32 s%d, 0' % S_RPOS)
    a('s_mov_b32 s%d, 4' % S_CNT)
    a('s_mov_b32 s66, 0x%x' % ((-(NS - 1) * STAGE) & 0xffffffff))
    a('s_mov_b32 s67, %d' % STAGE)
    a('s_waitcnt lgkmcnt(0)')
    a.raw('.p2align 4')
    a.label(L + 'loop')
    for k in range(DA):
        odd = k % 2 == 1
        q = k % 2
        fill = {}
        def put(g, u, ins):
            fill.setdefault(4 * g + u, []).extend(ins if isinstance(ins, list) else [ins])
        def vadd(b):
            return 'v_add_u32 v%d, s%d, v%d' % (V_RD + b, S_RDELTA, V_RD + b)
        pre = []
        if odd:
            pre = ['s_waitcnt vmcnt(%d)' % NW, 's_barrier']
            if 'nobar' in OPT: pre = pre[:1]
        if 'nords' not in OPT:
            put(0, 0, rd(NT - 1, 0, q)); put(0, 1, rd(NT - 1, 1, q))
            for t in range(1, NT):
                put(t, 0, rd(t - 1, 0, 1 - q)); put(t, 1, rd(t - 1, 1, 1 - q))
        put(3, 3, 's_waitcnt lgkmcnt(8)')
        put(3 + NT // 2, 2 if NT == 14 else 3, 's_waitcnt lgkmcnt(8)')
        for i in range(4):
            if 'noa' not in OPT: put(i, 2, aload((k + 7) % DA, i))
        put(4, 2, adv_a())
        ps = list(range(0, n_first)) if odd else list(range(n_first, ND))
        for n, p in enumerate(ps):
            g = 5 + 2 * n
            put(g - 1, 3, m0_set(p))
            if 'nodma' not in OPT: put(g, 2, dma(p))
        if not odd:
            assert len(ps) == 3
            adv = adv_dma()
            if isw1:
                put(9, 3, adv[0]); put(11, 2, adv[1]); put(12, 2, adv[2:4]); put(13, 2, adv[4])
            else:
                put(10, 2, adv[0:2]); put(10, 3, adv[2]); put(11, 2, adv[3:6])
            put(0, 3, 's_add_u32 s%d, s%d, 1' % (S_RPOS, S_RPOS))
            put(1, 3, ['s_cmp_eq_u32 s%d, %d' % (S_RPOS, NS), 's_cselect_b32 s%d, s66, s67' % S_RDELTA])
            put(2, 3, 's_cselect_b32 s%d, 0, s%d' % (S_RPOS, S_RPOS))
            if isw1:
                for b in range(4):
                    put(10 + b, 3, vadd(b))
            else:
                put(9, 3, vadd(0)); put(10, 3, vadd(1)); put(11, 3, vadd(2))
        else:
            if isw1:
                put(1, 3, vadd(4)); put(2, 3, vadd(5))
            else:
                put(1, 3, vadd(3))
        for x in pre: a(x)
        for t in range(NT):
            for i in range(4):
                c = acc(i, t); W = bfrag(t); X = afrag(k % DA, i)
                if swapped(t):
                    a('v_mfma_f32_16x16x32_bf16 v[%d:%d], a[%d:%d], a[%d:%d], v[%d:%d]' % (c, c + 3, W, W + 3, X, X + 3, c, c + 3))
                else:
                    a('v_mfma_f32_16x16x32_bf16 v[%d:%d], a[%d:%d], a[%d:%d], v[%d:%d]' % (c, c + 3, X, X + 3, W, W + 3, c, c + 3))
                for x in fill.pop(4 * t + i, []): a(x)
        assert not fill, fill
    a('s_sub_u32 s%d, s%d, 1' % (S_CNT, S_CNT))
    a('s_cmp_lg_u32 s%d, 0' % S_CNT)
    a('s_cbranch_scc1 %sloop' % L)
    if stamps:
        a('s_memtime s[96:97]')
    a('s_nop 7')
    if isw1:
        a('s_mul_i32 s60, s%d, %d' % (S_MG, HO_MG))
        a('s_add_u32 s60, s60, %d' % WS_HO)
        a('s_mul_i32 s61, s%d, %d' % (S_J, 7 * 4096))
        a('s_add_u32 s60, s60, s61')
        a('s_and_b32 s62, s%d, 1' % S_J)
        a('s_lshl_b32 s63, s62, 12')
        a('s_add_u32 s64, s60, s63')
        a('s_xor_b32 s62, s62, 1')
        a('s_mul_i32 s62, s62, %d' % (6 * 4096))
        a('s_add_u32 s65, s60, s62')
        for p in range(7):
            if p < 6:
                a('s_add_u32 s66, s64, %d' % (p * 4096))
            else:
                a('s_mov_b32 s66, s65')
            for i in range(4):
                b = acc(i, 2 * p)
                for r in range(8):
                    a('v_max_f32 v%d, 0, v%d' % (T0 + (r & 1), b + r))
                    if r & 1:
                        a('v_pk_mul_f32 v[%d:%d], v[%d:%d], v[%d:%d]' % (b + r - 1, b + r, T0, T1, T0, T1))
                for r in range(4):
                    a('v_cvt_pk_bf16_f32 v%d, v%d, v%d' % (b + r, b + 2 * r, b + 2 * r + 1))
                a('buffer_store_dwordx4 v[%d:%d], v%d, s[%d:%d], s66 offen offset:%d' % (b, b + 3, V_A, S_OSRD, S_OSRD + 3, i * 1024))
    else:
        a('s_lshl_b32 s60, s%d, 19' % S_J)
        a('s_lshl_b32 s61, s%d, 12' % S_MG)
        a('s_add_u32 s60, s60, s61')
        a('s_add_u32 s60, s60, %d' % WS_QK)
        for p in range(4):
            a('s_add_u32 s66, s60, %d' % (p * 131072))
            for i in range(4):
                b = acc(i, 2 * p)
                for r in range(0, 8, 2):
                    a('v_pk_mul_f32 v[%d:%d], v[%d:%d], s[%d:%d]' % (b + r, b + r + 1, b + r, b + r + 1, S_SCALE, S_SCALE + 1))
                for r in range(4):
                    a('v_cvt_pk_bf16_f32 v%d, v%d, v%d' % (b + r, b + 2 * r, b + 2 * r + 1))
                a('buffer_store_dwordx4 v[%d:%d], v%d, s[%d:%d], s66 offen offset:%d' % (b, b + 3, V_A, S_OSRD, S_OSRD + 3, i * 1024))
        a('s_lshl_b32 s60, s%d, 18' % S_J)
        a('s_add_u32 s60, s60, s61')
        a('s_add_u32 s60, s60, %d' % WS_VT)
        for hv in range(2):
            a('s_add_u32 s66, s60, %d' % (hv * 131072))
            for dt in range(2):
                for ip in range(2):
                    b = acc(2 * ip, 8 + 2 * hv + dt)
                    for r in range(4):
                        a('v_cvt_pk_bf16_f32 v%d, v%d, v%d' % (b + r, b + 2 * r, b + 2 * r + 1))
                    a('buffer_store_dwordx4 v[%d:%d], v%d, s[%d:%d], s66 offen offset:%d' % (b, b + 3, V_A, S_OSRD, S_OSRD + 3, (ip * 2 + dt) * 1024))
    if stamps:
        a('s_waitcnt vmcnt(0)')
        a('s_memtime s[98:99]')
        a('s_memrealtime s[100:101]')
        a('s_waitcnt lgkmcnt(0)')
        a('s_sub_u32 s94, s94, s92')
        a('s_sub_u32 s96, s96, s92')
        a('s_sub_u32 s98, s98, s92')
        a('v_mov_b32 v0, s90')
        a('v_mov_b32 v1, s94')
        a('v_mov_b32 v2, s96')
        a('v_mov_b32 v3, s98')
        a('v_mov_b32 v4, s100')
        for n in range(4):
            a('s_sub_u32 s%d, s%d, s92' % (70 + 2 * n, 70 + 2 * n))
            a('v_mov_b32 v%d, s%d' % (12 + n, 70 + 2 * n))
        a('s_lshl_b32 s60, s2, 2')
        a('s_add_u32 s60, s60, s%d' % S_W)
        a('s_lshl_b32 s60, s60, 6')
        a('v_mov_b32 v8, s60')
        a('s_add_u32 s62, s10, %d' % (64 * MB))
        a('s_addc_u32 s63, s11, 0')
        srd(a, S_ASRD, 62, 63, 1 * MB)
        a('buffer_store_dwordx4 v[0:3], v8, s[%d:%d], 0 offen' % (S_ASRD, S_ASRD + 3))
        a('buffer_store_dword v4, v8, s[%d:%d], 0 offen offset:16' % (S_ASRD, S_ASRD + 3))
        a('buffer_store_dwordx4 v[12:15], v8, s[%d:%d], 0 offen offset:32' % (S_ASRD, S_ASRD + 3))
    a('s_endpgm')

MF = 'v_mfma_f32_16x16x32_bf16'
def gen_att(a):
    name = 'att_kernel'
    kernel_begin(a, name)
    KOFF, VOFF = 4096, 4096 + 32768
    Q = [8, 12]; KF = [16, 20]; VF = [24, 28]
    def S(par, T, q): return 32 + 16 * par + (q * 2 + T) * 4
    def C(T, q): return 64 + (q * 2 + T) * 4
    P = [80, 84]
    def O(q, d): return 88 + 12 * q + 4 * d
    ONES, MC, ML = 112, 116, 124
    M = [120, 121]; VKA, VVA = 122, 123
    VL16 = 1
    NEG = f2u(-1e30)
    a('s_cmp_ge_u32 s2, 256')
    a('s_cbranch_scc1 AT_end')
    a('s_load_dwordx2 s[4:5], s[0:1], %d' % KA_WS)
    a('v_lshrrev_b32 v2, 6, v0')
    a('v_and_b32 v3, 63, v0')
    a('v_readfirstlane_b32 s20, v2')
    a('v_lshlrev_b32 v%d, 4, v3' % VL16)
    a('s_and_b32 s21, s2, 31')
    a('s_lshr_b32 s22, s2, 5')
    a('s_waitcnt lgkmcnt(0)')
    srd(a, 8, 4, 5, 34 * MB)
    a('s_lshl_b32 s23, s21, 17')
    a('s_lshl_b32 s24, s22, 14')
    a('s_add_u32 s23, s23, s24')
    a('s_lshl_b32 s25, s20, 11')
    a('s_add_u32 s25, s25, s23')
    a('s_add_u32 s25, s25, %d' % WS_QK)
    a('buffer_load_dwordx4 v[%d:%d], v%d, s[8:11], s25 offen' % (Q[0], Q[0] + 3, VL16))
    a('buffer_load_dwordx4 v[%d:%d], v%d, s[8:11], s25 offen offset:1024' % (Q[1], Q[1] + 3, VL16))
    a('s_lshl_b32 s26, s20, 12')
    a('s_add_u32 s27, s24, s26')
    a('s_cmp_lt_u32 s27, 16384')
    a('s_cbranch_scc1 AT_nodma')
    a('s_add_u32 s27, s23, s26')
    a('s_add_u32 s28, s27, %d' % (WS_QK + 4 * MB - 16384))
    a('s_add_u32 s29, s27, %d' % (WS_VT - 16384))
    a('s_add_u32 m0, s26, %d' % KOFF)
    a('s_nop 0')
    for e in range(4):
        a('buffer_load_dwordx4 v%d, s[8:11], s28 offen offset:%d lds' % (VL16, e * 1024))
    a('s_add_u32 m0, s26, %d' % VOFF)
    a('s_nop 0')
    for e in range(4):
        a('buffer_load_dwordx4 v%d, s[8:11], s29 offen offset:%d lds' % (VL16, e * 1024))
    a.label('AT_nodma')
    a('v_and_b32 v4, 15, v3')
    a('v_lshrrev_b32 v5, 4, v3')
    a('v_lshlrev_b32 v5, 2, v5')
    a('v_mov_b32 v6, 0x%x' % NEG)
    for r in range(4):
        a('v_add_u32 v7, %d, v5' % r)
        a('v_cmp_le_u32 vcc, v7, v4')
        a('s_nop 1')
        a('v_cndmask_b32 v%d, v6, 0, vcc' % (MC + r))
        a('v_cndmask_b32 v%d, 0, v6, vcc' % (ML + r))
        a('v_mov_b32 v%d, 0x3f803f80' % (ONES + r))
    for q in range(2):
        for d in range(3):
            for r in range(4):
                a('v_mov_b32 v%d, 0' % (O(q, d) + r))
        a('v_mov_b32 v%d, v6' % M[q])
    a('s_add_u32 s30, s20, 1')
    a('s_cmp_eq_u32 s22, 0')
    a('s_cselect_b32 s30, s30, 9')
    a('s_lshl_b32 s31, s20, 11')
    a('s_add_u32 s31, s31, %d' % (KOFF + 16384))
    a('s_waitcnt vmcnt(0)')
    a('s_barrier')

    def setC(kind, p2):
        tab = {'diag': {(0, 0): 'c', (0, 1): '0', (1, 0): 'n', (1, 1): 'c'},
               'mid': {(0, 0): '0', (0, 1): '0', (1, 0): '0', (1, 1): '0'},
               'first': {(0, 0): 'l', (0, 1): 'n', (1, 0): '0', (1, 1): 'l'}}[kind]
        for (T, q), k in tab.items():
            for r in range(4):
                d = C(T, q) + r
                if k == 'n':
                    a('v_mov_b32 v%d, v6' % d)
                elif k == '0':
                    a('v_mov_b32 v%d, %s' % (d, ('v%d' % M[q]) if p2 else '0'))
                else:
                    src = (MC if k == 'c' else ML) + r
                    if p2: a('v_add_f32 v%d, v%d, v%d' % (d, src, M[q]))
                    else: a('v_mov_b32 v%d, v%d' % (d, src))
    def rdK():
        a('ds_read_b128 v[%d:%d], v%d' % (KF[0], KF[0] + 3, VKA))
        a('ds_read_b128 v[%d:%d], v%d offset:1024' % (KF[1], KF[1] + 3, VKA))
        a('v_subrev_u32 v%d, 2048, v%d' % (VKA, VKA))
    def rdV():
        a('ds_read_b128 v[%d:%d], v%d offset:32768' % (VF[0], VF[0] + 3, VVA))
        a('ds_read_b128 v[%d:%d], v%d offset:33792' % (VF[1], VF[1] + 3, VVA))
        a('v_subrev_u32 v%d, 2048, v%d' % (VVA, VVA))
    def mfS(par):
        for q in range(2):
            for T in range(2):
                d = S(par, T, q); c = C(T, q)
                a('%s v[%d:%d], v[%d:%d], v[%d:%d], v[%d:%d]' % (MF, d, d + 3, KF[T], KF[T] + 3, Q[q], Q[q] + 3, c, c + 3))
    for p2 in (0, 1):
        L = 'AT%d_' % p2
        a('v_add_u32 v%d, s31, v%d' % (VKA, VL16))
        a('v_add_u32 v%d, s31, v%d' % (VVA, VL16))
        rdK()
        setC('diag', p2)
        a('s_mov_b32 s32, 0')
        a('s_waitcnt lgkmcnt(0)')
        mfS(0)
        rdK()
        a('s_nop 1')
        setC('mid', p2)
        a.label(L + 'loop')
        for par in range(2):
            if p2: rdV()
            a('s_cmp_lg_u32 s32, 7')
            a('s_cbranch_scc1 %sskip%d' % (L, par))
            setC('first', p2)
            a('s_nop 1')
            a.label(L + 'skip%d' % par)
            a('s_waitcnt lgkmcnt(%d)' % (2 if p2 else 0))
            mfS(1 - par)
            rdK()
            if not p2:
                for q in range(2):
                    b = S(par, 0, q)
                    for r in range(0, 8, 2):
                        a('v_max3_f32 v%d, v%d, v%d, v%d' % (M[q], M[q], b + r, b + r + 1))
            else:
                for q in range(2):
                    b = S(par, 0, q)
                    for r in range(8):
                        a('v_exp_f32 v%d, v%d' % (b + r, b + r))
                    if q == 1: a('s_nop 0')
                for q in range(2):
                    b = S(par, 0, q)
                    for r in range(4):
                        a('v_cvt_pk_bf16_f32 v%d, v%d, v%d' % (P[q] + r, b + 2 * r, b + 2 * r + 1))
                a('s_waitcnt lgkmcnt(2)')
                a('s_nop 0')
                for q in range(2):
                    for d in range(3):
                        o = O(q, d); src = VF[d] if d < 2 else ONES
                        a('%s v[%d:%d], v[%d:%d], v[%d:%d], v[%d:%d]' % (MF, o, o + 3, src, src + 3, P[q], P[q] + 3, o, o + 3))
            a('s_add_u32 s32, s32, 1')
            a('s_cmp_eq_u32 s32, s30')
            if par == 0:
                a('s_cbranch_scc1 %sdone' % L)
            else:
                a('s_cbranch_scc0 %sloop' % L)
        a.label(L + 'done')
        if not p2:
            for q in range(2):
                m = M[q]
                a('v_mov_b32 v7, v%d' % m)
                a('s_nop 1')
                a('v_permlane16_swap_b32 v%d, v7' % m)
                a('s_nop 1')
                a('v_max_f32 v%d, v%d, v7' % (m, m))
                a('v_mov_b32 v7, v%d' % m)
                a('s_nop 1')
                a('v_permlane32_swap_b32 v%d, v7' % m)
                a('s_nop 1')
                a('v_max_f32 v%d, v%d, v7' % (m, m))
                a('v_sub_f32 v%d, 0, v%d' % (m, m))
            a('s_waitcnt lgkmcnt(0)')
    a('s_lshl_b32 s33, s22, 2')
    a('s_lshr_b32 s34, s20, 1')
    a('s_add_u32 s33, s33, s34')
    a('s_mul_i32 s33, s33, %d' % HO_MG)
    a('s_lshl_b32 s34, s21, 12')
    a('s_add_u32 s33, s33, s34')
    a('s_and_b32 s34, s20, 1')
    a('s_lshl_b32 s34, s34, 11')
    a('s_add_u32 s33, s33, s34')
    a('s_add_u32 s33, s33, %d' % (WS_HO + 112 * 4096))
    a('s_nop 3')
    for q in range(2):
        a('v_rcp_f32 v7, v%d' % O(q, 2))
        a('s_nop 0')
        b = O(q, 0)
        for r in range(8):
            a('v_mul_f32 v%d, v%d, v7' % (b + r, b + r))
        for r in range(4):
            a('v_cvt_pk_bf16_f32 v%d, v%d, v%d' % (b + r, b + 2 * r, b + 2 * r + 1))
        a('buffer_store_dwordx4 v[%d:%d], v%d, s[8:11], s33 offen offset:%d' % (b, b + 3, VL16, q * 1024))
    a.label('AT_end')
    a('s_endpgm')
    return name, kd(name, 128, 128), (256, 512, 4096 + 65536)

def gen_gemm2(a, stamps=False):
    name = 'gemm2_kernel'
    kernel_begin(a, name)
    NT = 4; DA = 8
    ACC, SAV, XR = 0, 32, 64
    V_RD, V_D, V_A, V_O = 80, 84, 85, 86
    T0, T1, T2, T3 = 88, 89, 90, 91
    V_LANE = 92
    def acc(i, t): return (i * NT + t) * 4
    def bfrag(par, t): return 16 * par + 4 * t
    def afrag(slot, i): return 32 + 8 * slot + 4 * i
    S_WSRD, S_ASRD, S_XSRD, S_OSRD, S_BSRD = 20, 24, 28, 32, 36
    S_W, S_BOFF, S_AOFF, S_WOFF, S_CNT, S_OOFF, S_OOFF2 = 40, 41, 42, 43, 44, 45, 46
    a('s_cmp_ge_u32 s2, 256')
    a('s_cbranch_scc1 G2_end')
    a('s_load_dwordx2 s[4:5], s[0:1], %d' % KA_W2)
    a('s_load_dwordx2 s[6:7], s[0:1], %d' % KA_WO)
    a('s_load_dwordx2 s[8:9], s[0:1], %d' % KA_B2)
    a('s_load_dwordx2 s[10:11], s[0:1], %d' % KA_WS)
    a('s_load_dwordx2 s[12:13], s[0:1], %d' % KA_X)
    a('s_load_dwordx2 s[14:15], s[0:1], %d' % KA_OUT)
    if stamps:
        a('s_memrealtime s[90:91]')
        a('s_memtime s[92:93]')
    a('v_lshrrev_b32 v%d, 6, v0' % T0)
    a('v_and_b32 v%d, 63, v0' % V_LANE)
    a('v_readfirstlane_b32 s%d, v%d' % (S_W, T0))
    a('s_and_b32 s50, s2, 7')
    a('s_lshr_b32 s51, s2, 3')
    a('s_lshr_b32 s52, s50, 1')
    a('s_lshl_b32 s52, s52, 2')
    a('s_and_b32 s53, s51, 3')
    a('s_add_u32 s52, s52, s53')
    a('s_and_b32 s53, s50, 1')
    a('s_lshl_b32 s53, s53, 3')
    a('s_lshr_b32 s54, s51, 2')
    a('s_add_u32 s53, s53, s54')
    a('v_lshrrev_b32 v%d, 4, v%d' % (T0, V_LANE))
    a('v_bfe_u32 v%d, v%d, 2, 2' % (T1, V_LANE))
    a('v_and_b32 v%d, 1, v%d' % (T2, T0))
    a('v_lshl_add_u32 v%d, v%d, 2, v%d' % (T2, T2, T1))
    a('v_and_b32 v%d, 6, v%d' % (T3, T2))
    a('v_bfe_u32 v%d, v%d, 1, 1' % (T1, V_LANE))
    a('v_or_b32 v%d, v%d, v%d' % (T3, T3, T1))
    a('v_lshrrev_b32 v%d, 1, v%d' % (T0, T0))
    a('v_lshlrev_b32 v%d, 10, v%d' % (T0, T0))
    a('v_lshl_add_u32 v%d, v%d, 7, v%d' % (T0, T2, T0))
    a('v_and_b32 v%d, 1, v%d' % (T1, V_LANE))
    a('v_lshl_add_u32 v%d, v%d, 3, v%d' % (T0, T1, T0))
    for b in range(4):
        a('v_xor_b32 v%d, %d, v%d' % (T1, 2 * b, T3))
        a('v_lshl_add_u32 v%d, v%d, 4, v%d' % (V_RD + b, T1, T0))
    a('v_lshrrev_b32 v%d, 3, v%d' % (T0, V_LANE))
    a('v_and_b32 v%d, 6, v%d' % (T1, T0))
    a('v_and_b32 v%d, 7, v%d' % (T2, V_LANE))
    a('v_xor_b32 v%d, v%d, v%d' % (T1, T1, T2))
    a('v_lshlrev_b32 v%d, 11, v%d' % (T0, T0))
    a('v_lshl_add_u32 v%d, v%d, 4, v%d' % (V_D, T1, T0))
    a('s_lshl_b32 s55, s%d, 14' % S_W)
    a('s_lshl_b32 s56, s53, 7')
    a('s_add_u32 s55, s55, s56')
    a('v_add_u32 v%d, s55, v%d' % (V_D, V_D))
    a('v_lshlrev_b32 v%d, 4, v%d' % (V_A, V_LANE))
    a('v_and_b32 v%d, 15, v%d' % (T0, V_LANE))
    a('v_lshlrev_b32 v%d, 11, v%d' % (T0, T0))
    a('v_lshrrev_b32 v%d, 4, v%d' % (T1, V_LANE))
    a('v_lshl_add_u32 v%d, v%d, 3, v%d' % (V_O, T1, T0))
    a('v_lshlrev_b32 v%d, 3, v%d' % (T2, T1))
    a('s_lshl_b32 s57, s52, 18')
    a('s_lshl_b32 s58, s%d, 16' % S_W)
    a('s_add_u32 s57, s57, s58')
    a('s_add_u32 s%d, s57, s56' % S_OOFF)
    a('s_add_u32 s%d, s%d, 32768' % (S_OOFF2, S_OOFF))
    a('s_mov_b32 s%d, 0' % S_BOFF)
    a('s_and_b32 s%d, s%d, 1' % (S_AOFF, S_W))
    a('s_lshl_b32 s%d, s%d, 11' % (S_AOFF, S_AOFF))
    a('s_lshl_b32 s%d, s%d, 10' % (S_WOFF, S_W))
    a('s_lshl_b32 s58, s52, 1')
    a('s_lshr_b32 s59, s%d, 1' % S_W)
    a('s_add_u32 s58, s58, s59')
    a('s_mul_i32 s58, s58, %d' % HO_MG)
    a('s_add_u32 s58, s58, %d' % WS_HO)
    a('s_waitcnt lgkmcnt(0)')
    srd(a, S_WSRD, 4, 5, 3584 * 2048)
    a('s_add_u32 s60, s10, s58')
    a('s_addc_u32 s61, s11, 0')
    srd(a, S_ASRD, 60, 61, HO_MG)
    srd(a, S_BSRD, 8, 9, 2048)
    srd(a, S_XSRD, 12, 13, 4 * MB)
    srd(a, S_OSRD, 14, 15, 4 * MB)
    def m0_set(slot): return 's_add_u32 m0, s%d, %d' % (S_WOFF, slot * 4096)
    def dma(): return 'buffer_load_dwordx4 v%d, s[%d:%d], s%d offen lds' % (V_D, S_WSRD, S_WSRD + 3, S_BOFF)
    def adv_b(): return 's_add_u32 s%d, s%d, 65536' % (S_BOFF, S_BOFF)
    def aload(slot, i):
        b = afrag(slot, i)
        return 'buffer_load_dwordx4 a[%d:%d], v%d, s[%d:%d], s%d offen offset:%d' % (b, b + 3, V_A, S_ASRD, S_ASRD + 3, S_AOFF, i * 1024)
    def adv_a(): return 's_add_u32 s%d, s%d, 4096' % (S_AOFF, S_AOFF)
    def rd(k, t, s):
        b = bfrag(k & 1, t) + 2 * s
        return 'ds_read_b64_tr_b16 a[%d:%d], v%d offset:%d' % (b, b + 1, V_RD + t, (k % 16) * 4096 + s * 2048)
    for t in range(NT):
        d = acc(1, t) + 2
        a('buffer_load_dwordx2 v[%d:%d], v%d, s[%d:%d], s56 offen offset:%d' % (d, d + 1, T2, S_BSRD, S_BSRD + 3, t * 32))
    def vstep(v):
        if v >= -7:
            a(aload((v + 7) % DA, 0)); a(aload((v + 7) % DA, 1)); a(adv_a())
        a(m0_set((v + 10) % 16)); a('s_nop 0'); a(dma()); a(adv_b())
    for v in range(-10, -2):
        vstep(v)
    a('s_waitcnt vmcnt(18)')
    for t in range(NT):
        d = acc(1, t); e = acc(0, t)
        a('v_lshlrev_b32 v%d, 16, v%d' % (d, d + 2))
        a('v_and_b32 v%d, 0xffff0000, v%d' % (d + 1, d + 2))
        a('v_lshlrev_b32 v%d, 16, v%d' % (d + 2, d + 3))
        a('v_and_b32 v%d, 0xffff0000, v%d' % (d + 3, d + 3))
        for r in range(4):
            a('v_mov_b32 v%d, v%d' % (e + r, d + r))
    a('s_waitcnt vmcnt(12)')
    a('s_barrier')
    if stamps: a('s_memtime s[94:95]')
    for t in range(NT):
        a(rd(0, t, 0)); a(rd(0, t, 1))
    vstep(-2)
    for t in range(NT - 1):
        a(rd(1, t, 0)); a(rd(1, t, 1))
    vstep(-1)
    a('s_mov_b32 s%d, 0' % S_CNT)
    a('s_waitcnt lgkmcnt(0)')
    a.raw('.p2align 4')
    a.label('G2_loop')
    a('s_cmp_eq_u32 s%d, 7' % S_CNT)
    a('s_cbranch_scc1 G2_accsw')
    a.label('G2_accsw_ret')
    for k in range(16):
        fill = {}
        def put(p, ins): fill.setdefault(p, []).extend(ins if isinstance(ins, list) else [ins])
        if k % 2 == 0: a('s_waitcnt vmcnt(12) lgkmcnt(6)')
        else: a('s_waitcnt lgkmcnt(6)')
        if k % 4 == 2: a('s_barrier')
        if k == 6:
            a('s_cmp_eq_u32 s%d, 6' % S_CNT)
            a('s_cbranch_scc1 G2_srdsw')
            a.label('G2_srdsw_ret')
        put(0, rd(k + 1, NT - 1, 0)); put(1, rd(k + 1, NT - 1, 1))
        for t in range(1, NT):
            put(2 * t, rd(k + 2, t - 1, 0)); put(2 * t + 1, rd(k + 2, t - 1, 1))
        put(0, aload((k + 7) % DA, 0)); put(2, aload((k + 7) % DA, 1)); put(3, adv_a())
        put(4, m0_set((k + 10) % 16)); put(5, dma()); put(6, adv_b())
        for t in range(NT):
            for i in range(2):
                c = acc(i, t); W = bfrag(k & 1, t); X = afrag(k % DA, i)
                a('%s v[%d:%d], a[%d:%d], a[%d:%d], v[%d:%d]' % (MF, c, c + 3, W, W + 3, X, X + 3, c, c + 3))
                for x in fill.pop(2 * t + i, []): a(x)
        assert not fill
    a('s_add_u32 s%d, s%d, 1' % (S_CNT, S_CNT))
    a('s_cmp_lt_u32 s%d, 9' % S_CNT)
    a('s_cbranch_scc1 G2_loop')
    if stamps: a('s_memtime s[96:97]')
    a('s_mov_b32 s62, 0x%x' % f2u(-math.log2(math.e)))
    for i in range(2):
        for t in range(NT):
            g = SAV + acc(i, t)
            for r in range(4):
                a('v_mul_f32 v%d, s62, v%d' % (T0 + r, g + r))
            for r in range(4):
                a('v_exp_f32 v%d, v%d' % (T0 + r, T0 + r))
            a('s_nop 0')
            for r in range(4):
                a('v_add_f32 v%d, 1.0, v%d' % (T0 + r, T0 + r))
            for r in range(4):
                a('v_rcp_f32 v%d, v%d' % (T0 + r, T0 + r))
            a('s_nop 0')
            for r in range(4):
                a('v_mul_f32 v%d, v%d, v%d' % (g + r, g + r, T0 + r))
    for i in range(2):
        for t in range(NT):
            g = SAV + acc(i, t); sv = acc(i, t); x = XR + (i * NT + t) * 2
            a('v_lshlrev_b32 v%d, 16, v%d' % (T0, x))
            a('v_and_b32 v%d, 0xffff0000, v%d' % (T1, x))
            a('v_lshlrev_b32 v%d, 16, v%d' % (T2, x + 1))
            a('v_and_b32 v%d, 0xffff0000, v%d' % (T3, x + 1))
            for r in range(4):
                a('v_fmac_f32 v%d, v%d, v%d' % (T0 + r, sv + r, g + r))
            a('v_cvt_pk_bf16_f32 v%d, v%d, v%d' % (x, T0, T1))
            a('v_cvt_pk_bf16_f32 v%d, v%d, v%d' % (x + 1, T2, T3))
            a('buffer_store_dwordx2 v[%d:%d], v%d, s[%d:%d], s%d offen offset:%d' % (x, x + 1, V_O, S_OSRD, S_OSRD + 3, S_OOFF2 if i else S_OOFF, t * 32))
    if stamps:
        emit_stamps(a, S_W, 10, 65 * MB, S_ASRD)
    a.label('G2_end')
    a('s_endpgm')
    a.label('G2_accsw')
    for i in range(2):
        for t in range(NT):
            x = XR + (i * NT + t) * 2
            a('buffer_load_dwordx2 v[%d:%d], v%d, s[%d:%d], s%d offen offset:%d' % (x, x + 1, V_O, S_XSRD, S_XSRD + 3, S_OOFF2 if i else S_OOFF, t * 32))
    for r in range(0, 32, 2):
        a('v_pk_mov_b32 v[%d:%d], v[%d:%d], v[%d:%d] op_sel:[0,1]' % (SAV + r, SAV + r + 1, r, r + 1, r, r + 1))
    for r in range(0, 32, 2):
        a('v_pk_mov_b32 v[%d:%d], 0, 0' % (r, r + 1))
    a('s_nop 1')
    a('s_branch G2_accsw_ret')
    a.label('G2_srdsw')
    srd(a, S_WSRD, 6, 7, 1024 * 2048)
    a('s_mov_b32 s%d, 0' % S_BOFF)
    a('s_branch G2_srdsw_ret')
    return name, kd(name, 96 + 96, 96), (256, 256, 65536)

def emit_stamps(a, S_W, S_WS, off, S_SRD, nw_log=2):
    a('s_waitcnt vmcnt(0)')
    a('s_memtime s[98:99]')
    a('s_memrealtime s[100:101]')
    a('s_waitcnt lgkmcnt(0)')
    a('s_sub_u32 s94, s94, s92')
    a('s_sub_u32 s96, s96, s92')
    a('s_sub_u32 s98, s98, s92')
    a('v_mov_b32 v0, s90')
    a('v_mov_b32 v1, s94')
    a('v_mov_b32 v2, s96')
    a('v_mov_b32 v3, s98')
    a('v_mov_b32 v4, s100')
    a('s_lshl_b32 s60, s2, %d' % nw_log)
    a('s_add_u32 s60, s60, s%d' % S_W)
    a('s_lshl_b32 s60, s60, 6')
    a('v_mov_b32 v8, s60')
    a('s_add_u32 s62, s%d, %d' % (S_WS, off))
    a('s_addc_u32 s63, s%d, 0' % (S_WS + 1))
    srd(a, S_SRD, 62, 63, 1 * MB)
    a('buffer_store_dwordx4 v[0:3], v8, s[%d:%d], 0 offen' % (S_SRD, S_SRD + 3))
    a('buffer_store_dword v4, v8, s[%d:%d], 0 offen offset:16' % (S_SRD, S_SRD + 3))

HEADER = open('recurrent_scan__sliding_block__dense_activation_squared_relu__prompt.s.ref').read().split('; Override')[0]

def build(kernels, stamps=False):
    a = Asm()
    infos = []
    for g in kernels:
        infos.append(g(a))
    out = HEADER
    for name, k, (gx, bx, lds) in infos:
        out += '; @launch kernel=%s grid=(%d,1,1) block=(%d,1,1) lds=%d\n' % (name, gx, bx, lds)
    out += '.amdgcn_target "amdgcn-amd-amdhsa--gfx950"\n.text\n'
    out += a.text()
    out += '.section .rodata,"a"\n'
    for name, k, _ in infos:
        out += k
    return out

if __name__ == '__main__':
    stamps = '--stamps' in sys.argv
    outp = [x for x in sys.argv[1:] if not x.startswith('--')][0]
    ks = [gen_ln, lambda a: gen_gemm1(a, stamps), gen_att, lambda a: gen_gemm2(a, stamps)]
    open(outp, 'w').write(build(ks))
```

```python
import sys
sys.path.insert(0, 'dev')
from asmlib import *

OPT = set(x[2:] for x in sys.argv if x.startswith('--'))
def FL(key):
    for o in OPT:
        if o.startswith(key + '='): return ' ' + o.split('=')[1].replace('+', ' ')
    return ''
def OV(key, default):
    for o in OPT:
        if o.startswith(key + '='): return int(o.split('=')[1])
    return default
MB = 1 << 20
WS_XN = 0
WS_QK = 4 * MB
WS_VT = 12 * MB
WS_HO = 16 * MB
HO_MG = 144 * 4096
WS_SIZE = 268435456
QSCALE = 0x3e8293ee
import struct, math
def f2u(f): return struct.unpack('<I', struct.pack('<f', f))[0]
QSCALE = f2u(math.log2(math.e) / math.sqrt(32.0))

KA_X, KA_WQKV, KA_WO, KA_BX, KA_W1, KA_B1, KA_W2, KA_B2, KA_OUT, KA_DBG, KA_WS = [8 * i for i in range(11)]

def xlane_sum_g(a, v, t):
    a('v_mov_b32 v%d, v%d' % (t, v))
    a('s_nop 1')
    a('v_permlane16_swap_b32 v%d, v%d' % (v, t))
    a('s_nop 1')
    a('v_add_f32 v%d, v%d, v%d' % (v, v, t))
    a('v_mov_b32 v%d, v%d' % (t, v))
    a('s_nop 1')
    a('v_permlane32_swap_b32 v%d, v%d' % (v, t))
    a('s_nop 1')
    a('v_add_f32 v%d, v%d, v%d' % (v, v, t))

def bf16r(a, v):
    a('v_cvt_pk_bf16_f32 v%d, v%d, v%d' % (v, v, v))
    a('v_lshlrev_b32 v%d, 16, v%d' % (v, v))

def gen_ln(a):
    name = 'ln_kernel'
    kernel_begin(a, name)
    PFR = OV('pfr', 256)
    a('s_cmp_ge_u32 s2, 128')
    a('s_cbranch_scc1 LN_pf')
    a('s_load_dwordx2 s[4:5], s[0:1], %d' % KA_X)
    a('s_load_dwordx2 s[6:7], s[0:1], %d' % KA_WS)
    a('v_and_b32 v1, 15, v0')
    a('v_bfe_u32 v2, v0, 4, 2')
    a('v_lshrrev_b32 v3, 6, v0')
    a('v_lshlrev_b32 v4, 11, v1')
    a('v_lshl_add_u32 v4, v2, 4, v4')
    a('v_lshl_add_u32 v4, v3, 8, v4')
    a('s_lshl_b32 s3, s2, 15')
    a('s_waitcnt lgkmcnt(0)')
    srd(a, 8, 4, 5, 2048 * 1024 * 2)
    srd(a, 12, 6, 7, 45 * MB)
    for e in range(4):
        a('buffer_load_dwordx4 v[%d:%d], v4, s[8:11], s3 offen offset:%d' % (8 + 4 * e, 11 + 4 * e, e * 64))
    a('v_and_b32 v5, 63, v0')
    a('v_lshlrev_b32 v5, 4, v5')
    a('v_lshl_add_u32 v5, v3, 14, v5')
    a('s_lshr_b32 s16, s2, 2')
    a('s_lshl_b32 s16, s16, 17')
    a('s_and_b32 s17, s2, 3')
    a('s_lshl_b32 s17, s17, 10')
    a('s_add_u32 s16, s16, s17')
    a('v_mov_b32 v6, 0')
    a('v_and_b32 v7, 31, v0')
    a('v_lshlrev_b32 v7, 2, v7')
    a('s_lshl_b32 s18, s2, 9')
    a('s_add_u32 s18, s18, %d' % (44 * MB + 65536))
    a('s_and_b32 s19, s2, 7')
    a('s_lshl_b32 s19, s19, 12')
    a('s_add_u32 s19, s19, %d' % (44 * MB))
    a('v_cmp_gt_u32 vcc, 32, v0')
    a('s_and_saveexec_b64 s[20:21], vcc')
    a('s_cbranch_execz LN_noz')
    a('buffer_store_dword v6, v7, s[12:15], s18 offen')
    a('buffer_store_dword v6, v7, s[12:15], s18 offen offset:256')
    a('buffer_store_dword v6, v7, s[12:15], s19 offen')
    a.label('LN_noz')
    a('s_mov_b64 exec, s[20:21]')
    a('s_waitcnt vmcnt(0)')
    for d in range(16):
        a('v_lshlrev_b32 v%d, 16, v%d' % (32 + 2 * d, 8 + d))
        a('v_and_b32 v%d, 0xffff0000, v%d' % (33 + 2 * d, 8 + d))
    a('v_pk_add_f32 v[24:25], v[32:33], v[34:35]')
    a('v_pk_add_f32 v[26:27], v[36:37], v[38:39]')
    for d in range(2, 8):
        a('v_pk_add_f32 v[24:25], v[24:25], v[%d:%d]' % (32 + 4 * d, 33 + 4 * d))
        a('v_pk_add_f32 v[26:27], v[26:27], v[%d:%d]' % (34 + 4 * d, 35 + 4 * d))
    a('v_pk_add_f32 v[24:25], v[24:25], v[26:27]')
    a('v_add_f32 v24, v24, v25')
    xlane_sum_g(a, 24, 25)
    a('v_mul_f32 v24, 0x%x, v24' % f2u(1.0 / 128))
    a('v_mov_b32 v25, v24')
    a('v_mov_b32 v26, 0')
    a('v_mov_b32 v27, 0')
    for d in range(16):
        a('v_pk_add_f32 v[28:29], v[%d:%d], v[24:25] neg_lo:[0,1] neg_hi:[0,1]' % (32 + 2 * d, 33 + 2 * d))
        a('v_pk_fma_f32 v[26:27], v[28:29], v[28:29], v[26:27]')
    a('v_add_f32 v25, v26, v27')
    xlane_sum_g(a, 25, 26)
    a('v_lshlrev_b32 v6, 3, v1')
    a('v_lshl_add_u32 v7, v3, 7, v6')
    a('ds_write_b64 v7, v[24:25]')
    a('s_waitcnt lgkmcnt(0)')
    a('s_barrier')
    for w in range(8):
        a('ds_read_b64 v[%d:%d], v6 offset:%d' % (8 + 2 * w, 9 + 2 * w, w * 128))
    a('s_waitcnt lgkmcnt(0)')
    a('v_add_f32 v24, v8, v10')
    a('v_add_f32 v25, v9, v11')
    for w in range(2, 8):
        a('v_add_f32 v24, v24, v%d' % (8 + 2 * w))
        a('v_add_f32 v25, v25, v%d' % (9 + 2 * w))
    a('v_mul_f32 v24, 0.125, v24' if False else 'v_mul_f32 v24, 0x3e000000, v24')
    a('v_mov_b32 v26, 0')
    for w in range(8):
        a('v_sub_f32 v27, v%d, v24' % (8 + 2 * w))
        a('v_fmac_f32 v26, v27, v27')
    a('v_mov_b32 v27, 0x43000000')
    a('v_fmac_f32 v25, v26, v27')
    a('v_mul_f32 v25, 0x%x, v25' % f2u(1.0 / 1024))
    bf16r(a, 24)
    bf16r(a, 25)
    a('v_add_f32 v25, 0x%x, v25' % f2u(1e-5))
    bf16r(a, 25)
    a('v_sqrt_f32 v25, v25')
    a('s_nop 0')
    bf16r(a, 25)
    a('v_rcp_f32 v26, v25')
    a('v_mov_b32 v25, v24')
    a('v_mov_b32 v27, v26')
    for d in range(16):
        x0 = 32 + 2 * d
        a('v_pk_add_f32 v[%d:%d], v[%d:%d], v[24:25] neg_lo:[0,1] neg_hi:[0,1]' % (x0, x0 + 1, x0, x0 + 1))
        a('v_cvt_pk_bf16_f32 v28, v%d, v%d' % (x0, x0 + 1))
        a('v_lshlrev_b32 v%d, 16, v28' % x0)
        a('v_and_b32 v%d, 0xffff0000, v28' % (x0 + 1))
        a('v_pk_mul_f32 v[%d:%d], v[%d:%d], v[26:27]' % (x0, x0 + 1, x0, x0 + 1))
        a('v_cvt_pk_bf16_f32 v%d, v%d, v%d' % (8 + d, x0, x0 + 1))
    for e in range(4):
        a('s_add_u32 s17, s16, %d' % (e * 4096))
        a('buffer_store_dwordx4 v[%d:%d], v5, s[12:15], s17 offen' % (8 + 4 * e, 11 + 4 * e))
    a.label('LN_end')
    a('s_endpgm')
    a.label('LN_pf')
    if PFR:
        a('s_cmp_ge_u32 s2, 256')
        a('s_cbranch_scc1 LN_end')
        a('s_load_dwordx2 s[4:5], s[0:1], %d' % KA_WQKV)
        a('s_load_dwordx2 s[6:7], s[0:1], %d' % KA_W1)
        a('s_load_dwordx2 s[16:17], s[0:1], %d' % KA_B1)
        a('v_lshrrev_b32 v1, 6, v0')
        a('v_and_b32 v2, 63, v0')
        a('v_readfirstlane_b32 s20, v1')
        a('s_and_b32 s21, s2, 7')
        a('s_lshr_b32 s22, s2, 3')
        a('s_and_b32 s22, s22, 15')
        a('s_lshl_b32 s22, s22, 2')
        a('s_lshr_b32 s23, s20, 1')
        a('s_add_u32 s22, s22, s23')
        if PFR < 512:
            a('s_cmp_ge_u32 s22, %d' % (PFR // 8))
            a('s_cbranch_scc1 LN_end')
        a('v_lshrrev_b32 v3, 3, v2')
        a('v_and_b32 v4, 7, v2')
        a('s_lshl_b32 s24, s22, 3')
        a('v_add_u32 v3, s24, v3')
        a('s_and_b32 s25, s20, 1')
        a('s_cmp_eq_u32 s25, 1')
        a('s_cbranch_scc1 LN_pf_w1')
        a('s_mov_b32 s26, 6144')
        a('v_mul_lo_u32 v3, v3, s26')
        a('v_min_u32 v4, 5, v4')
        a('s_lshl_b32 s27, s21, 8')
        a('v_lshrrev_b32 v5, 1, v4')
        a('v_lshl_add_u32 v3, v5, 11, v3')
        a('v_and_b32 v6, 1, v4')
        a('v_lshl_add_u32 v3, v6, 7, v3')
        a('v_add_u32 v3, s27, v3')
        a('s_waitcnt lgkmcnt(0)')
        srd(a, 8, 4, 5, 1024 * 6144)
        for e in range(max(1, PFR // 512)):
            a('s_mov_b32 s28, %d' % (e * 512 * 6144))
            a('buffer_load_dword v%d, v3, s[8:11], s28 offen%s' % (8 + e, FL('pff')))
        a('s_endpgm')
        a.label('LN_pf_w1')
        a('s_mov_b32 s26, 7168')
        a('v_mul_lo_u32 v3, v3, s26')
        a('v_min_u32 v4, 6, v4')
        a('s_mul_i32 s27, s21, 896')
        a('v_lshl_add_u32 v3, v4, 7, v3')
        a('v_add_u32 v3, s27, v3')
        a('s_waitcnt lgkmcnt(0)')
        srd(a, 8, 6, 7, 1024 * 7168)
        srd(a, 12, 16, 17, 7168)
        a('v_lshlrev_b32 v5, 7, v4')
        a('buffer_load_dword v7, v5, s[12:15], s27 offen')
        for e in range(max(1, PFR // 512)):
            a('s_mov_b32 s28, %d' % (e * 512 * 7168))
            a('buffer_load_dword v%d, v3, s[8:11], s28 offen%s' % (8 + e, FL('pff')))
    a('s_endpgm')
    return name, kd(name, 64, 64), (256 if PFR else 128, 512, 1024)

def gen_gemm1(a, stamps=False):
    name = 'gemm1_kernel'
    NS = OV('ns1', 4); DA = OV('da1', 4)
    kernel_begin(a, name)
    a('s_cmp_ge_u32 s2, 256')
    a('s_cbranch_scc1 G1_end')
    a('s_load_dwordx2 s[4:5], s[0:1], %d' % KA_WQKV)
    a('s_load_dwordx2 s[6:7], s[0:1], %d' % KA_W1)
    a('s_load_dwordx2 s[8:9], s[0:1], %d' % KA_B1)
    a('s_load_dwordx2 s[10:11], s[0:1], %d' % KA_WS)
    if stamps:
        a('s_memrealtime s[90:91]')
        a('s_memtime s[92:93]')
    a('v_mov_b32 v255, v0')
    a('v_lshrrev_b32 v254, 6, v0')
    a('s_nop 0')
    a('v_readfirstlane_b32 s40, v254')
    a('v_and_b32 v253, 63, v255')
    a('s_and_b32 s41, s2, 7')
    a('s_lshr_b32 s42, s2, 3')
    a('s_and_b32 s43, s42, 7')
    a('s_lshr_b32 s44, s42, 3')
    a('s_and_b32 s45, s44, 1')
    a('s_lshl_b32 s41, s41, 1')
    a('s_add_u32 s45, s45, s41')
    a('s_lshl_b32 s46, s43, 2')
    a('s_add_u32 s46, s46, s40')
    a('s_cmp_ge_u32 s44, 2')
    a('s_cbranch_scc1 G1_w1')
    gemm1_variant(a, 'qkv', NS, DA, stamps)
    a.label('G1_w1')
    gemm1_variant(a, 'w1', NS, DA, stamps)
    a.label('G1_end')
    a('s_endpgm')
    return name, kd(name, 512, 256), (256, 256, NS * 28672)

def gemm1_variant(a, var, NS, DA, stamps):
    MFM = 'v_mfma_f32_16x16x32_bf16'
    isw1 = var == 'w1'
    NT = 14 if isw1 else 12
    LD = 7168 if isw1 else 6144
    SLAB = 7168 if isw1 else 6144
    STAGE = 4 * SLAB
    ND = 7 if isw1 else 6
    L = 'G1%s_' % var
    SF = FL('s1w' if isw1 else 's1q')
    V_RD = 224
    V_DE, V_DO, V_DS = 230, 231, 232
    V_A = 233
    T0, T1, T2, T3 = 234, 235, 236, 237
    V_LANE = 253
    def bfrag(t): return 4 * t
    def afrag(slot, i): return 64 + 16 * slot + 4 * i
    XB = 64 + 16 * DA
    def swapped(t): return isw1 or t < 8
    def acc(i, t):
        if swapped(t):
            return (i * NT + t) * 4 if isw1 else (i * 8 + t) * 4
        return 128 + ((t - 8) * 4 + i) * 4
    S_WSRD, S_ASRD, S_OSRD, S_BSRD = 12, 16, 20, 24
    S_W, S_J, S_MG = 40, 45, 46
    S_BOFF, S_BOFF2, S_AOFF, S_T, S_RDELTA, S_RPOS, S_CNT = 50, 51, 52, 53, 54, 55, 56
    S_SCALE = 58
    S_ST = 28
    a.c('--- variant %s' % var)
    a('v_lshrrev_b32 v%d, 3, v%d' % (T0, V_LANE))
    a('s_lshr_b32 s60, s%d, 1' % S_W)
    a('v_and_b32 v%d, 6, v%d' % (T1, T0))
    a('s_lshl_b32 s60, s60, 5')
    a('v_and_b32 v%d, 7, v%d' % (T2, V_LANE))
    a('s_and_b32 s61, s%d, 1' % S_W)
    a('v_xor_b32 v%d, v%d, v%d' % (T1, T1, T2))
    a('s_lshl_b32 s61, s61, 2')
    a('v_lshrrev_b32 v%d, 2, v%d' % (T2, T0))
    a('s_add_u32 s60, s60, s61')
    a('v_and_b32 v%d, 3, v%d' % (T0, T0))
    a('s_mov_b32 s61, %d' % LD)
    a('v_lshl_add_u32 v%d, v%d, 3, v%d' % (T0, T2, T0))
    a('v_add_u32 v%d, s60, v%d' % (T0, T0))
    a('v_mul_lo_u32 v%d, v%d, s61' % (T0, T0))
    a('v_lshl_add_u32 v%d, v%d, 4, v%d' % (V_DE, T1, T0))
    if isw1:
        a('s_and_b32 s62, s%d, 1' % S_J)
        a('s_lshl_b32 s63, s62, 6')
        a('s_xor_b32 s62, s62, 1')
        a('s_mul_i32 s62, s62, 384')
        a('v_add_u32 v%d, s63, v%d' % (V_DE, V_DE))
        a('v_lshrrev_b32 v%d, 4, v%d' % (T0, V_LANE))
        a('v_and_b32 v%d, 1, v%d' % (T1, T0))
        a('v_lshlrev_b32 v%d, 1, v%d' % (T1, T1))
        a('v_and_b32 v%d, 3, v%d' % (T2, V_LANE))
        a('v_xor_b32 v%d, v%d, v%d' % (T1, T1, T2))
        a('v_bfe_u32 v%d, v%d, 2, 2' % (T2, V_LANE))
        a('v_lshl_add_u32 v%d, v%d, 3, v%d' % (T0, T0, T2))
        a('v_add_u32 v%d, s60, v%d' % (T0, T0))
        a('v_mul_lo_u32 v%d, v%d, s61' % (T0, T0))
        a('v_lshl_add_u32 v%d, v%d, 4, v%d' % (V_DS, T1, T0))
        a('v_add_u32 v%d, s62, v%d' % (V_DS, V_DS))
    a('v_add_u32 v%d, %d, v%d' % (V_DO, 16 * LD, V_DE))
    a('v_lshlrev_b32 v%d, 4, v%d' % (V_A, V_LANE))
    if isw1:
        a('s_mul_i32 s%d, s%d, 448' % (S_BOFF, S_J))
        a('s_add_u32 s64, s%d, s63' % S_BOFF)
        a('s_add_u32 s65, s%d, s62' % S_BOFF)
    else:
        a('s_lshl_b32 s%d, s%d, 7' % (S_BOFF, S_J))
        a('s_add_u32 s%d, s%d, 4096' % (S_BOFF2, S_BOFF))
    a('s_mov_b32 s%d, 0' % S_AOFF)
    a('s_mul_i32 s%d, s%d, %d' % (S_T, S_W, SLAB))
    if isw1:
        a('s_sub_u32 s65, s65, 384')
        a('v_mov_b32 v%d, s64' % T1)
        a('v_mov_b32 v%d, s65' % T2)
        a('v_cmp_gt_u32 vcc, 48, v%d' % V_LANE)
        a('s_nop 1')
        a('v_cndmask_b32 v%d, v%d, v%d, vcc' % (T1, T2, T1))
        a('v_lshl_add_u32 v%d, v%d, 3, v%d' % (T3, V_LANE, T1))
    a('s_waitcnt lgkmcnt(0)')
    if isw1:
        srd(a, S_BSRD, 8, 9, 3584 * 2)
        a('buffer_load_dwordx2 v[238:239], v%d, s[%d:%d], 0 offen' % (T3, S_BSRD, S_BSRD + 3))
        srd(a, S_WSRD, 6, 7, 1024 * LD)
    else:
        srd(a, S_WSRD, 4, 5, 1024 * LD)

    if isw1:
        pieces = [(V_DE, S_BOFF, 0, 0), (V_DO, S_BOFF, 0, 1024), (V_DE, S_BOFF, 128, 2048), (V_DO, S_BOFF, 128, 3072),
                  (V_DE, S_BOFF, 256, 4096), (V_DO, S_BOFF, 256, 5120), (V_DS, S_BOFF, 0, 6144)]
    else:
        pieces = [(V_DE, S_BOFF, 0, 0), (V_DO, S_BOFF, 0, 1024), (V_DE, S_BOFF, 2048, 2048), (V_DO, S_BOFF, 2048, 3072),
                  (V_DE, S_BOFF2, 0, 4096), (V_DO, S_BOFF2, 0, 5120)]
    n_first = (ND + 1) // 2
    def m0_set(p):
        v, s, imm, lo = pieces[p]
        return 's_add_u32 m0, s%d, %d' % (S_T, lo - imm)
    def dma(p):
        v, s, imm, lo = pieces[p]
        return 'buffer_load_dwordx4 v%d, s[%d:%d], s%d offen offset:%d%s lds' % (v, S_WSRD, S_WSRD + 3, s, imm, FL('w1f'))
    def aload(slot, i):
        b = afrag(slot, i)
        return 'buffer_load_dwordx4 a[%d:%d], v%d, s[%d:%d], s%d offen offset:%d%s' % (b, b + 3, V_A, S_ASRD, S_ASRD + 3, S_AOFF, i * 1024, FL('a1f'))
    def adv_a():
        return ['s_add_u32 s%d, s%d, 4096' % (S_AOFF, S_AOFF)]
    def adv_dma():
        r = ['s_add_u32 s%d, s%d, %d' % (S_BOFF, S_BOFF, 64 * LD)]
        if not isw1:
            r.append('s_add_u32 s%d, s%d, %d' % (S_BOFF2, S_BOFF2, 64 * LD))
        r += ['s_add_u32 s%d, s%d, %d' % (S_T, S_T, STAGE),
              's_cmp_ge_u32 s%d, %d' % (S_T, NS * STAGE),
              's_cselect_b32 s60, %d, 0' % (NS * STAGE),
              's_sub_u32 s%d, s%d, s60' % (S_T, S_T)]
        return r
    def rd(t, s, q, dst=None):
        b = (bfrag(t) if dst is None else dst) + 2 * s
        if t < 12:
            v = V_RD + (t & 3); off = (t >> 2) * 2048
        else:
            v = V_RD + 4 + (t - 12); off = 0
        off += (2 * q + s) * SLAB
        return 'ds_read_b64_tr_b16 a[%d:%d], v%d offset:%d' % (b, b + 1, v, off)
    def mfma(i, t, W, X, first=False):
        c = acc(i, t)
        if not swapped(t): W, X = X, W
        cs = 'v[%d:%d]' % (c, c + 3)
        if first:
            cs = ('v[%d:%d]' % (acc(3, t), acc(3, t) + 3)) if isw1 else '0'
        return '%s v[%d:%d], a[%d:%d], a[%d:%d], %s' % (MFM, c, c + 3, W, W + 3, X, X + 3, cs)
    LA = DA - 1; DS = NS - 2
    def step_ops(v):
        ops = []
        if v + LA >= 0: ops += [('A', v + LA)] * 4
        st = (v + 1) // 2 + DS
        if st >= 0: ops += [('D', st)] * (n_first if v % 2 else ND - n_first)
        return ops
    V0 = -max(LA, 2 * DS + 1)
    def need_cnt(k):
        seq = []
        for v in range(V0, k): seq += step_ops(v)
        need = set()
        if k >= 0: need.add(('A', k))
        if k % 2: need.add(('D', (k + 1) // 2))
        last = max(i for i, o in enumerate(seq) if o in need)
        return len(seq) - 1 - last
    def vstep_list(vs):
        r = []
        if vs + LA >= 0:
            for i in range(4):
                r.append([aload((vs + LA) % DA, i)] + (adv_a() if i == 3 else []))
        odd = vs % 2 != 0
        if (vs + 1) // 2 + DS >= 0:
            ps = list(range(0, n_first) if odd else range(n_first, ND))
            for p in ps:
                r.append([m0_set(p), 's_nop 0', dma(p)] + (adv_dma() if (not odd and p == ps[-1]) else []))
        return r
    if stamps: a('s_memtime s[70:71]')
    pro = []
    for vs in range(V0, -1): pro += vstep_list(vs)
    seq = []
    for v in range(V0, -1): seq += step_ops(v)
    nb1 = max(i for i, o in enumerate(seq) if o in (('A', 0), ('D', 0))) + 1
    did_asrd = False
    def asrd():
        a('s_lshl_b32 s61, s%d, 17' % S_MG)
        a('s_add_u32 s62, s10, s61')
        a('s_addc_u32 s63, s11, 0')
        srd(a, S_ASRD, 62, 63, 131072)
    for n in range(nb1):
        if seq[n][0] == 'A' and not did_asrd:
            asrd(); did_asrd = True
        for x in pro[n]: a(x)
    srd(a, S_OSRD, 10, 11, 34 * MB)
    a('v_lshrrev_b32 v%d, 4, v%d' % (T0, V_LANE))
    a('v_bfe_u32 v%d, v%d, 2, 2' % (T1, V_LANE))
    a('v_and_b32 v%d, 1, v%d' % (T2, T0))
    a('v_lshl_add_u32 v%d, v%d, 2, v%d' % (T2, T2, T1))
    a('v_and_b32 v%d, 6, v%d' % (T3, T2))
    a('v_bfe_u32 v%d, v%d, 1, 1' % (T1, V_LANE))
    a('v_or_b32 v%d, v%d, v%d' % (T3, T3, T1))
    a('v_lshrrev_b32 v%d, 1, v%d' % (T0, T0))
    a('v_lshlrev_b32 v%d, 10, v%d' % (T0, T0))
    a('v_lshl_add_u32 v%d, v%d, 7, v%d' % (T0, T2, T0))
    a('v_and_b32 v%d, 1, v%d' % (T1, V_LANE))
    a('v_lshl_add_u32 v%d, v%d, 3, v%d' % (T0, T1, T0))
    for b in range(4):
        a('v_xor_b32 v%d, %d, v%d' % (T1, 2 * b, T3))
        a('v_lshl_add_u32 v%d, v%d, 4, v%d' % (V_RD + b, T1, T0))
    if isw1:
        a('v_lshrrev_b32 v%d, 2, v%d' % (T0, V_LANE))
        a('v_lshlrev_b32 v%d, 6, v%d' % (T0, T0))
        a('v_and_b32 v%d, 1, v%d' % (T1, V_LANE))
        a('v_lshl_add_u32 v%d, v%d, 3, v%d' % (T0, T1, T0))
        a('v_add_u32 v%d, 6144, v%d' % (T0, T0))
        a('v_bfe_u32 v%d, v%d, 4, 1' % (T1, V_LANE))
        a('v_lshlrev_b32 v%d, 1, v%d' % (T1, T1))
        a('v_bfe_u32 v%d, v%d, 1, 1' % (T2, V_LANE))
        a('v_or_b32 v%d, v%d, v%d' % (T1, T1, T2))
        for b in range(2):
            a('v_xor_b32 v%d, %d, v%d' % (T2, 2 * b, T1))
            a('v_lshl_add_u32 v%d, v%d, 4, v%d' % (V_RD + 4 + b, T2, T0))
    if isw1:
        a('s_mul_i32 s60, s%d, %d' % (S_MG, HO_MG))
        a('s_add_u32 s60, s60, %d' % WS_HO)
        a('s_mul_i32 s61, s%d, %d' % (S_J, 7 * 4096))
        a('s_add_u32 s60, s60, s61')
        a('s_and_b32 s62, s%d, 1' % S_J)
        a('s_lshl_b32 s63, s62, 12')
        a('s_add_u32 s%d, s60, s63' % S_ST)
        for p in range(1, 6):
            a('s_add_u32 s%d, s%d, %d' % (S_ST + p, S_ST, p * 4096))
        a('s_xor_b32 s62, s62, 1')
        a('s_mul_i32 s62, s62, %d' % (6 * 4096))
        a('s_add_u32 s%d, s60, s62' % (S_ST + 6))
    else:
        a('s_lshl_b32 s60, s%d, 18' % S_J)
        a('s_lshl_b32 s61, s%d, 12' % S_MG)
        a('s_add_u32 s60, s60, s61')
        for p in range(6):
            a('s_add_u32 s%d, s60, %d' % (S_ST + p, WS_QK + (p >> 1) * 4 * MB + (p & 1) * 131072))
        a('s_mov_b32 s%d, 0x%x' % (S_SCALE, QSCALE))
    if stamps: a('s_memtime s[72:73]')
    if isw1:
        a('v_lshrrev_b32 v%d, 4, v%d' % (T0, V_LANE))
        a('v_lshlrev_b32 v%d, 2, v%d' % (T0, T0))
        a('s_waitcnt vmcnt(%d)' % nb1)
        for t in range(NT):
            d = acc(3, t)
            a('ds_bpermute_b32 v%d, v%d, v238 offset:%d' % (d + 2, T0, t * 16))
            a('ds_bpermute_b32 v%d, v%d, v239 offset:%d' % (d + 3, T0, t * 16))
            if t == 6: a('s_waitcnt lgkmcnt(0)')
        a('s_waitcnt lgkmcnt(0)')
        for t in range(NT):
            d = acc(3, t)
            a('v_lshlrev_b32 v%d, 16, v%d' % (d, d + 2))
            a('v_and_b32 v%d, 0xffff0000, v%d' % (d + 1, d + 2))
            a('v_lshlrev_b32 v%d, 16, v%d' % (d + 2, d + 3))
            a('v_and_b32 v%d, 0xffff0000, v%d' % (d + 3, d + 3))
    if stamps: a('s_memtime s[74:75]')
    rest = pro[nb1:]
    nrest = len(rest)
    npre = OV('npre', 8)
    for n in range(npre):
        for x in rest.pop(0): a(x)
    a('s_waitcnt vmcnt(%d)' % (4 + npre))
    if stamps: a('s_memtime s[76:77]')
    a('s_barrier')
    if stamps:
        a('s_memtime s[94:95]')
    for t in range(NT - 1):
        a(rd(t, 0, 0)); a(rd(t, 1, 0))
        if t >= 1 and rest:
            for x in rest.pop(0): a(x)
    assert not rest
    TAIL = 'notail' not in OPT
    a('s_mov_b32 s%d, 0' % S_RPOS)
    a('s_mov_b32 s%d, 7' % S_CNT)
    a('s_mov_b32 s66, 0x%x' % ((-(NS - 1) * STAGE) & 0xffffffff))
    a('s_mov_b32 s67, %d' % STAGE)
    a('s_waitcnt lgkmcnt(0)')
    def vadd(b):
        return 'v_add_u32 v%d, s%d, v%d' % (V_RD + b, S_RDELTA, V_RD + b)
    def emit_step(k, do_a=True, do_dma=True, first=False):
        odd = k % 2 == 1
        q = k % 2
        fill = {}
        def put(g, u, ins):
            fill.setdefault(4 * g + u, []).extend(ins if isinstance(ins, list) else [ins])
        nk = min(need_cnt(k), need_cnt(k + DA), need_cnt(k + 2 * DA))
        pre = ['s_waitcnt vmcnt(%d)' % nk]
        if not odd:
            pk = min(need_cnt(k - 1), need_cnt(k - 1 + DA), need_cnt(k - 1 + 2 * DA))
            if pk + len(step_ops(k - 1 + DA)) <= nk: pre = []
        if odd and 'nobar' not in OPT:
            pre.append('s_barrier')
        if first:
            pre = ['s_waitcnt vmcnt(%d)' % nrest]
            do_a = do_dma = False
            ops = vstep_list(-1) + vstep_list(0)
            pos = 2
            for o in ops:
                o = [x for x in o if x != 's_nop 0']
                if o[0].startswith('s_add_u32 m0'):
                    fill.setdefault(pos - 1, []).append(o[0]); o = o[1:]
                fill.setdefault(pos, []).extend(o)
                pos += 3
            assert pos - 3 < 4 * NT
        if 'nords' not in OPT:
            put(0, 0, rd(NT - 1, 0, q)); put(0, 1, rd(NT - 1, 1, q))
            for t in range(1, NT):
                put(t, 0, rd(t - 1, 0, 1 - q)); put(t, 1, rd(t - 1, 1, 1 - q))
        put(3, 3, 's_waitcnt lgkmcnt(8)')
        put(3 + NT // 2, 2 if NT == 14 else 3, 's_waitcnt lgkmcnt(8)')
        if do_a:
            for i in range(4):
                if 'noa' not in OPT: put(i, 2, aload((k + LA) % DA, i))
            put(4, 2, adv_a())
        ps = list(range(0, n_first)) if odd else list(range(n_first, ND))
        if do_dma:
            for n, p in enumerate(ps):
                g = 5 + 2 * n
                put(g - 1, 3, m0_set(p))
                if 'nodma' not in OPT: put(g, 2, dma(p))
        if not odd:
            assert len(ps) == 3
            adv = adv_dma()
            if do_dma:
                if isw1:
                    put(9, 3, adv[0]); put(11, 2, adv[1]); put(12, 2, adv[2:4]); put(13, 2, adv[4])
                else:
                    put(10, 2, adv[0:2]); put(10, 3, adv[2]); put(11, 2, adv[3:6])
            put(0, 3, 's_add_u32 s%d, s%d, 1' % (S_RPOS, S_RPOS))
            put(1, 3, ['s_cmp_eq_u32 s%d, %d' % (S_RPOS, NS), 's_cselect_b32 s%d, s66, s67' % S_RDELTA])
            put(1 if first else 2, 3, 's_cselect_b32 s%d, 0, s%d' % (S_RPOS, S_RPOS))
            if isw1:
                for b in range(4):
                    put(10 + b, 3, vadd(b))
            else:
                put(9, 3, vadd(0)); put(10, 3, vadd(1)); put(11, 3, vadd(2))
        else:
            if isw1:
                put(1, 3, vadd(4)); put(2, 3, vadd(5))
            else:
                put(1, 3, vadd(3))
        for x in pre: a(x)
        for t in range(NT):
            for i in range(4):
                a(mfma(i, t, bfrag(t), afrag(k % DA, i), first))
                for x in fill.pop(4 * t + i, []): a(x)
        assert not fill, fill
    assert DA == 4
    emit_step(0, first=True)
    a.raw('.p2align 4')
    a.label(L + 'loop')
    for k in range(1, DA + 1):
        emit_step(k)
    a('s_sub_u32 s%d, s%d, 1' % (S_CNT, S_CNT))
    a('s_cmp_lg_u32 s%d, 0' % S_CNT)
    a('s_cbranch_scc1 %sloop' % L)
    def epi(p):
        r = []
        def st(b, so, off):
            return 'buffer_store_dwordx4 v[%d:%d], v%d, s[%d:%d], s%d offen offset:%d%s' % (b, b + 3, V_A, S_OSRD, S_OSRD + 3, so, off, SF)
        def cvt(b):
            return ['v_cvt_pk_bf16_f32 v%d, v%d, v%d' % (b + r_, b + 2 * r_, b + 2 * r_ + 1) for r_ in range(4)]
        if isw1:
            for i in range(4):
                b = acc(i, 2 * p)
                if 'pk' in OPT:
                    for r_ in range(0, 8, 2):
                        tt = T0 + (r_ & 2)
                        r.append('v_max_f32 v%d, 0, v%d' % (tt, b + r_))
                        r.append('v_max_f32 v%d, 0, v%d' % (tt + 1, b + r_ + 1))
                        r.append('v_pk_mul_f32 v[%d:%d], v[%d:%d], v[%d:%d]' % (b + r_, b + r_ + 1, tt, tt + 1, tt, tt + 1))
                    r += cvt(b)
                else:
                    for r_ in range(8):
                        r.append('v_mul_f32 v%d, v%d, abs(v%d)' % (b + r_, b + r_, b + r_))
                    r += cvt(b)
                    for r_ in range(4):
                        r.append('v_pk_max_i16 v%d, v%d, 0' % (b + r_, b + r_))
                r.append(st(b, S_ST + p, i * 1024))
        elif p < 4:
            for i in range(4):
                b = acc(i, 2 * p)
                for r_ in range(8):
                    if p < 2: r.append('v_mul_f32 v%d, s%d, v%d' % (b + r_, S_SCALE, b + r_))
                r += cvt(b)
                r.append(st(b, S_ST + p, i * 1024))
        else:
            hv = p - 4
            for dt in range(2):
                for ip in range(2):
                    b = acc(2 * ip, 8 + 2 * hv + dt)
                    r += cvt(b)
                    r.append(st(b, S_ST + 4 + hv, (ip * 2 + dt) * 1024))
        return r
    def pf2():
        if not isw1 and 'nopf2' not in OPT:
            a('s_load_dwordx2 s[4:5], s[0:1], %d' % KA_W2)
            a('s_load_dwordx2 s[6:7], s[0:1], %d' % KA_WO)
            a('s_lshl_b32 s60, s%d, 5' % S_J)
            a('s_add_u32 s60, s60, s%d' % S_MG)
            a('s_lshl_b32 s60, s60, 13')
            a('s_add_u32 s61, s60, %d' % (4 * MB))
            a('v_lshlrev_b32 v%d, 7, v%d' % (T0, V_LANE))
            a('s_waitcnt lgkmcnt(0)')
            srd(a, S_WSRD, 4, 5, 3584 * 2048)
            srd(a, S_BSRD, 6, 7, 1024 * 2048)
            a('buffer_load_dword v%d, v%d, s[%d:%d], s60 offen%s' % (T1, T0, S_WSRD, S_WSRD + 3, FL('pf2f')))
            a('buffer_load_dword v%d, v%d, s[%d:%d], s61 offen%s' % (T2, T0, S_WSRD, S_WSRD + 3, FL('pf2f')))
            a('buffer_load_dword v%d, v%d, s[%d:%d], s60 offen%s' % (T3, T0, S_BSRD, S_BSRD + 3, FL('pf2f')))
    NP = NT // 2
    if TAIL:
        if stamps: a('s_memtime s[96:97]')
        assert DA == 4
        def xb(par, tl, kk): return XB + 16 * par + 8 * kk + 4 * tl
        def xreads(p):
            r = []
            for kk in range(2):
                for tl in range(2):
                    for s_ in range(2):
                        r.append(rd(2 * p + tl, s_, kk, dst=xb(p & 1, tl, kk)))
            return r
        a('s_waitcnt vmcnt(7)')
        a('s_barrier')
        a(rd(NT - 1, 0, 1)); a(rd(NT - 1, 1, 1))
        for b in ((4, 5) if isw1 else (3,)): a(vadd(b))
        for x in xreads(0): a(x)
        a('s_waitcnt lgkmcnt(10)')
        for p in range(NP):
            ms = []
            for kk in range(3):
                for tl in range(2):
                    for i in range(4):
                        t = 2 * p + tl
                        W = bfrag(t) if kk == 0 else xb(p & 1, tl, kk - 1)
                        ms.append(mfma(i, t, W, afrag((29 + kk) % DA, i)))
            nxt = xreads(p + 1) if p + 1 < NP else []
            ep = epi(p - 1) if p > 0 else []
            ngap = len(ms) - 4
            for g, m in enumerate(ms):
                if g == 8:
                    a('s_waitcnt lgkmcnt(%d)' % min(len(nxt), 8))
                if g == 16 and p == 0:
                    a('s_waitcnt vmcnt(0)')
                    pf2()
                a(m)
                if g < 4:
                    for x in nxt[2 * g:2 * g + 2]: a(x)
                    if not nxt: a('s_nop 0')
                else:
                    lo = (g - 4) * len(ep) // ngap; hi = (g - 3) * len(ep) // ngap
                    for x in ep[lo:hi]: a(x)
        a('s_nop 7')
        for x in epi(NP - 1): a(x)
    else:
        for k in (1, 2, 3): emit_step(k)
        if stamps: a('s_memtime s[96:97]')
        pf2()
        a('s_nop 7')
        for p in range(NP):
            for x in epi(p): a(x)
    if stamps:
        emit_stamps(a, S_W, 10, 64 * MB, S_ASRD, extra=True)
    a('s_endpgm')

MF = 'v_mfma_f32_16x16x32_bf16'
def gen_att(a):
    name = 'att_kernel'
    kernel_begin(a, name)
    KOFF, VOFF = 4096, 4096 + 32768
    Q = [8, 12]; KF = [16, 20]; VF = [24, 28]
    def S(par, T, q): return 32 + 16 * par + (q * 2 + T) * 4
    def C(T, q): return 64 + (q * 2 + T) * 4
    P = [80, 84]
    def O(q, d): return 88 + 12 * q + 4 * d
    ONES, MC, ML = 112, 116, 124
    M = [120, 121]; VKA, VVA = 122, 123
    VL16 = 1
    NEG = f2u(-1e30)
    a('s_cmp_ge_u32 s2, 256')
    a('s_cbranch_scc1 AT_end')
    a('s_load_dwordx2 s[4:5], s[0:1], %d' % KA_WS)
    a('v_lshrrev_b32 v2, 6, v0')
    a('v_and_b32 v3, 63, v0')
    a('v_readfirstlane_b32 s20, v2')
    a('v_lshlrev_b32 v%d, 4, v3' % VL16)
    a('s_and_b32 s21, s2, 31')
    a('s_lshr_b32 s22, s2, 5')
    a('s_waitcnt lgkmcnt(0)')
    srd(a, 8, 4, 5, 34 * MB)
    a('s_lshl_b32 s23, s21, 17')
    a('s_lshl_b32 s24, s22, 14')
    a('s_add_u32 s23, s23, s24')
    a('s_lshl_b32 s25, s20, 11')
    a('s_add_u32 s25, s25, s23')
    a('s_add_u32 s25, s25, %d' % WS_QK)
    a('buffer_load_dwordx4 v[%d:%d], v%d, s[8:11], s25 offen' % (Q[0], Q[0] + 3, VL16))
    a('buffer_load_dwordx4 v[%d:%d], v%d, s[8:11], s25 offen offset:1024' % (Q[1], Q[1] + 3, VL16))
    a('s_lshl_b32 s26, s20, 12')
    a('s_add_u32 s27, s24, s26')
    a('s_cmp_lt_u32 s27, 16384')
    a('s_cbranch_scc1 AT_nodma')
    a('s_add_u32 s27, s23, s26')
    a('s_add_u32 s28, s27, %d' % (WS_QK + 4 * MB - 16384))
    a('s_add_u32 s29, s27, %d' % (WS_VT - 16384))
    a('s_add_u32 m0, s26, %d' % KOFF)
    a('s_nop 0')
    for e in range(4):
        a('buffer_load_dwordx4 v%d, s[8:11], s28 offen offset:%d lds' % (VL16, e * 1024))
    a('s_add_u32 m0, s26, %d' % VOFF)
    a('s_nop 0')
    for e in range(4):
        a('buffer_load_dwordx4 v%d, s[8:11], s29 offen offset:%d lds' % (VL16, e * 1024))
    a.label('AT_nodma')
    a('v_and_b32 v4, 15, v3')
    a('v_lshrrev_b32 v5, 4, v3')
    a('v_lshlrev_b32 v5, 2, v5')
    a('v_mov_b32 v6, 0x%x' % NEG)
    for r in range(4):
        a('v_add_u32 v7, %d, v5' % r)
        a('v_cmp_le_u32 vcc, v7, v4')
        a('s_nop 1')
        a('v_cndmask_b32 v%d, v6, 0, vcc' % (MC + r))
        a('v_cndmask_b32 v%d, 0, v6, vcc' % (ML + r))
        a('v_mov_b32 v%d, 0x3f803f80' % (ONES + r))
    for q in range(2):
        for d in range(3):
            for r in range(4):
                a('v_mov_b32 v%d, 0' % (O(q, d) + r))
        a('v_mov_b32 v%d, v6' % M[q])
    a('s_add_u32 s30, s20, 1')
    a('s_cmp_eq_u32 s22, 0')
    a('s_cselect_b32 s30, s30, 9')
    a('s_lshl_b32 s31, s20, 11')
    a('s_add_u32 s31, s31, %d' % (KOFF + 16384))
    a('s_waitcnt vmcnt(0)')
    a('s_barrier')

    def setC(kind, p2):
        tab = {'diag': {(0, 0): 'c', (0, 1): '0', (1, 0): 'n', (1, 1): 'c'},
               'mid': {(0, 0): '0', (0, 1): '0', (1, 0): '0', (1, 1): '0'},
               'first': {(0, 0): 'l', (0, 1): 'n', (1, 0): '0', (1, 1): 'l'}}[kind]
        for (T, q), k in tab.items():
            for r in range(4):
                d = C(T, q) + r
                if k == 'n':
                    a('v_mov_b32 v%d, v6' % d)
                elif k == '0':
                    a('v_mov_b32 v%d, %s' % (d, ('v%d' % M[q]) if p2 else '0'))
                else:
                    src = (MC if k == 'c' else ML) + r
                    if p2: a('v_add_f32 v%d, v%d, v%d' % (d, src, M[q]))
                    else: a('v_mov_b32 v%d, v%d' % (d, src))
    def rdK():
        a('ds_read_b128 v[%d:%d], v%d' % (KF[0], KF[0] + 3, VKA))
        a('ds_read_b128 v[%d:%d], v%d offset:1024' % (KF[1], KF[1] + 3, VKA))
        a('v_subrev_u32 v%d, 2048, v%d' % (VKA, VKA))
    def rdV():
        a('ds_read_b128 v[%d:%d], v%d offset:32768' % (VF[0], VF[0] + 3, VVA))
        a('ds_read_b128 v[%d:%d], v%d offset:33792' % (VF[1], VF[1] + 3, VVA))
        a('v_subrev_u32 v%d, 2048, v%d' % (VVA, VVA))
    def mfS(par):
        for q in range(2):
            for T in range(2):
                d = S(par, T, q); c = C(T, q)
                a('%s v[%d:%d], v[%d:%d], v[%d:%d], v[%d:%d]' % (MF, d, d + 3, KF[T], KF[T] + 3, Q[q], Q[q] + 3, c, c + 3))
    for p2 in (0, 1):
        L = 'AT%d_' % p2
        a('v_add_u32 v%d, s31, v%d' % (VKA, VL16))
        a('v_add_u32 v%d, s31, v%d' % (VVA, VL16))
        rdK()
        setC('diag', p2)
        a('s_mov_b32 s32, 0')
        a('s_waitcnt lgkmcnt(0)')
        mfS(0)
        rdK()
        a('s_nop 1')
        setC('mid', p2)
        a.label(L + 'loop')
        for par in range(2):
            if p2: rdV()
            a('s_cmp_lg_u32 s32, 7')
            a('s_cbranch_scc1 %sskip%d' % (L, par))
            setC('first', p2)
            a('s_nop 1')
            a.label(L + 'skip%d' % par)
            a('s_waitcnt lgkmcnt(%d)' % (2 if p2 else 0))
            mfS(1 - par)
            rdK()
            if not p2:
                for q in range(2):
                    b = S(par, 0, q)
                    for r in range(0, 8, 2):
                        a('v_max3_f32 v%d, v%d, v%d, v%d' % (M[q], M[q], b + r, b + r + 1))
            else:
                for q in range(2):
                    b = S(par, 0, q)
                    for r in range(8):
                        a('v_exp_f32 v%d, v%d' % (b + r, b + r))
                    if q == 1: a('s_nop 0')
                for q in range(2):
                    b = S(par, 0, q)
                    for r in range(4):
                        a('v_cvt_pk_bf16_f32 v%d, v%d, v%d' % (P[q] + r, b + 2 * r, b + 2 * r + 1))
                a('s_waitcnt lgkmcnt(2)')
                a('s_nop 0')
                for q in range(2):
                    for d in range(3):
                        o = O(q, d); src = VF[d] if d < 2 else ONES
                        a('%s v[%d:%d], v[%d:%d], v[%d:%d], v[%d:%d]' % (MF, o, o + 3, src, src + 3, P[q], P[q] + 3, o, o + 3))
            a('s_add_u32 s32, s32, 1')
            a('s_cmp_eq_u32 s32, s30')
            if par == 0:
                a('s_cbranch_scc1 %sdone' % L)
            else:
                a('s_cbranch_scc0 %sloop' % L)
        a.label(L + 'done')
        if not p2:
            for q in range(2):
                m = M[q]
                a('v_mov_b32 v7, v%d' % m)
                a('s_nop 1')
                a('v_permlane16_swap_b32 v%d, v7' % m)
                a('s_nop 1')
                a('v_max_f32 v%d, v%d, v7' % (m, m))
                a('v_mov_b32 v7, v%d' % m)
                a('s_nop 1')
                a('v_permlane32_swap_b32 v%d, v7' % m)
                a('s_nop 1')
                a('v_max_f32 v%d, v%d, v7' % (m, m))
                a('v_sub_f32 v%d, 0, v%d' % (m, m))
            a('s_waitcnt lgkmcnt(0)')
    a('s_lshl_b32 s33, s22, 2')
    a('s_lshr_b32 s34, s20, 1')
    a('s_add_u32 s33, s33, s34')
    a('s_mul_i32 s33, s33, %d' % HO_MG)
    a('s_lshl_b32 s34, s21, 12')
    a('s_add_u32 s33, s33, s34')
    a('s_and_b32 s34, s20, 1')
    a('s_lshl_b32 s34, s34, 11')
    a('s_add_u32 s33, s33, s34')
    a('s_add_u32 s33, s33, %d' % (WS_HO + 112 * 4096))
    a('s_nop 3')
    for q in range(2):
        a('v_rcp_f32 v7, v%d' % O(q, 2))
        a('s_nop 0')
        b = O(q, 0)
        for r in range(8):
            a('v_mul_f32 v%d, v%d, v7' % (b + r, b + r))
        for r in range(4):
            a('v_cvt_pk_bf16_f32 v%d, v%d, v%d' % (b + r, b + 2 * r, b + 2 * r + 1))
        a('buffer_store_dwordx4 v[%d:%d], v%d, s[8:11], s33 offen offset:%d' % (b, b + 3, VL16, q * 1024))
    a.label('AT_end')
    a('s_endpgm')
    return name, kd(name, 128, 128), (256, 512, 4096 + 65536)

def gen_gemm2(a, stamps=False):
    name = 'gemm2_kernel'
    kernel_begin(a, name)
    NT = 4; DA = 8
    ACC, SAV, XR = 0, 32, 64
    V_RD, V_D, V_A, V_O = 80, 84, 85, 86
    T0, T1, T2, T3 = 88, 89, 90, 91
    V_LANE = 92
    def acc(i, t): return (i * NT + t) * 4
    def bfrag(par, t): return 16 * par + 4 * t
    def afrag(slot, i): return 32 + 8 * slot + 4 * i
    S_WSRD, S_ASRD, S_XSRD, S_OSRD, S_BSRD = 20, 24, 28, 32, 36
    S_W, S_BOFF, S_AOFF, S_WOFF, S_CNT, S_OOFF, S_OOFF2 = 40, 41, 42, 43, 44, 45, 46
    a('s_cmp_ge_u32 s2, 256')
    a('s_cbranch_scc1 G2_end')
    a('s_load_dwordx2 s[4:5], s[0:1], %d' % KA_W2)
    a('s_load_dwordx2 s[6:7], s[0:1], %d' % KA_WO)
    a('s_load_dwordx2 s[8:9], s[0:1], %d' % KA_B2)
    a('s_load_dwordx2 s[10:11], s[0:1], %d' % KA_WS)
    a('s_load_dwordx2 s[12:13], s[0:1], %d' % KA_X)
    a('s_load_dwordx2 s[14:15], s[0:1], %d' % KA_OUT)
    if stamps:
        a('s_memrealtime s[90:91]')
        a('s_memtime s[92:93]')
    a('v_lshrrev_b32 v%d, 6, v0' % T0)
    a('v_and_b32 v%d, 63, v0' % V_LANE)
    a('v_readfirstlane_b32 s%d, v%d' % (S_W, T0))
    a('s_and_b32 s50, s2, 7')
    a('s_lshr_b32 s51, s2, 3')
    a('s_lshr_b32 s52, s50, 1')
    a('s_lshl_b32 s52, s52, 2')
    a('s_and_b32 s53, s51, 3')
    a('s_add_u32 s52, s52, s53')
    a('s_and_b32 s53, s50, 1')
    a('s_lshl_b32 s53, s53, 3')
    a('s_lshr_b32 s54, s51, 2')
    a('s_add_u32 s53, s53, s54')
    a('v_lshrrev_b32 v%d, 4, v%d' % (T0, V_LANE))
    a('v_bfe_u32 v%d, v%d, 2, 2' % (T1, V_LANE))
    a('v_and_b32 v%d, 1, v%d' % (T2, T0))
    a('v_lshl_add_u32 v%d, v%d, 2, v%d' % (T2, T2, T1))
    a('v_and_b32 v%d, 6, v%d' % (T3, T2))
    a('v_bfe_u32 v%d, v%d, 1, 1' % (T1, V_LANE))
    a('v_or_b32 v%d, v%d, v%d' % (T3, T3, T1))
    a('v_lshrrev_b32 v%d, 1, v%d' % (T0, T0))
    a('v_lshlrev_b32 v%d, 10, v%d' % (T0, T0))
    a('v_lshl_add_u32 v%d, v%d, 7, v%d' % (T0, T2, T0))
    a('v_and_b32 v%d, 1, v%d' % (T1, V_LANE))
    a('v_lshl_add_u32 v%d, v%d, 3, v%d' % (T0, T1, T0))
    for b in range(4):
        a('v_xor_b32 v%d, %d, v%d' % (T1, 2 * b, T3))
        a('v_lshl_add_u32 v%d, v%d, 4, v%d' % (V_RD + b, T1, T0))
    a('v_lshrrev_b32 v%d, 3, v%d' % (T0, V_LANE))
    a('v_and_b32 v%d, 6, v%d' % (T1, T0))
    a('v_and_b32 v%d, 7, v%d' % (T2, V_LANE))
    a('v_xor_b32 v%d, v%d, v%d' % (T1, T1, T2))
    a('v_lshlrev_b32 v%d, 11, v%d' % (T0, T0))
    a('v_lshl_add_u32 v%d, v%d, 4, v%d' % (V_D, T1, T0))
    a('s_lshl_b32 s55, s%d, 14' % S_W)
    a('s_lshl_b32 s56, s53, 7')
    a('s_add_u32 s55, s55, s56')
    a('v_add_u32 v%d, s55, v%d' % (V_D, V_D))
    a('v_lshlrev_b32 v%d, 4, v%d' % (V_A, V_LANE))
    a('v_and_b32 v%d, 15, v%d' % (T0, V_LANE))
    a('v_lshlrev_b32 v%d, 11, v%d' % (T0, T0))
    a('v_lshrrev_b32 v%d, 4, v%d' % (T1, V_LANE))
    a('v_lshl_add_u32 v%d, v%d, 3, v%d' % (V_O, T1, T0))
    a('v_lshlrev_b32 v%d, 3, v%d' % (T2, T1))
    a('s_lshl_b32 s57, s52, 18')
    a('s_lshl_b32 s58, s%d, 16' % S_W)
    a('s_add_u32 s57, s57, s58')
    a('s_add_u32 s%d, s57, s56' % S_OOFF)
    a('s_add_u32 s%d, s%d, 32768' % (S_OOFF2, S_OOFF))
    a('s_mov_b32 s%d, 0' % S_BOFF)
    a('s_and_b32 s%d, s%d, 1' % (S_AOFF, S_W))
    a('s_lshl_b32 s%d, s%d, 11' % (S_AOFF, S_AOFF))
    a('s_lshl_b32 s%d, s%d, 10' % (S_WOFF, S_W))
    a('s_lshl_b32 s58, s52, 1')
    a('s_lshr_b32 s59, s%d, 1' % S_W)
    a('s_add_u32 s58, s58, s59')
    a('s_mul_i32 s58, s58, %d' % HO_MG)
    a('s_add_u32 s58, s58, %d' % WS_HO)
    a('s_waitcnt lgkmcnt(0)')
    srd(a, S_WSRD, 4, 5, 3584 * 2048)
    a('s_add_u32 s60, s10, s58')
    a('s_addc_u32 s61, s11, 0')
    srd(a, S_ASRD, 60, 61, HO_MG)
    srd(a, S_BSRD, 8, 9, 2048)
    srd(a, S_XSRD, 12, 13, 4 * MB)
    srd(a, S_OSRD, 14, 15, 4 * MB)
    def m0_set(slot): return 's_add_u32 m0, s%d, %d' % (S_WOFF, slot * 4096)
    def dma(): return 'buffer_load_dwordx4 v%d, s[%d:%d], s%d offen%s lds' % (V_D, S_WSRD, S_WSRD + 3, S_BOFF, FL('w2f'))
    def adv_b(): return 's_add_u32 s%d, s%d, 65536' % (S_BOFF, S_BOFF)
    def aload(slot, i):
        b = afrag(slot, i)
        return 'buffer_load_dwordx4 a[%d:%d], v%d, s[%d:%d], s%d offen offset:%d%s' % (b, b + 3, V_A, S_ASRD, S_ASRD + 3, S_AOFF, i * 1024, FL('a2f'))
    def adv_a(): return 's_add_u32 s%d, s%d, 4096' % (S_AOFF, S_AOFF)
    def rd(k, t, s):
        b = bfrag(k & 1, t) + 2 * s
        return 'ds_read_b64_tr_b16 a[%d:%d], v%d offset:%d' % (b, b + 1, V_RD + t, (k % 16) * 4096 + s * 2048)
    for t in range(NT):
        d = acc(1, t) + 2
        a('buffer_load_dwordx2 v[%d:%d], v%d, s[%d:%d], s56 offen offset:%d' % (d, d + 1, T2, S_BSRD, S_BSRD + 3, t * 32))
    def vstep(v):
        if v >= -7:
            a(aload((v + 7) % DA, 0)); a(aload((v + 7) % DA, 1)); a(adv_a())
        a(m0_set((v + 10) % 16)); a('s_nop 0'); a(dma()); a(adv_b())
    for v in range(-10, -2):
        vstep(v)
    a('s_waitcnt vmcnt(18)')
    for t in range(NT):
        d = acc(1, t); e = acc(0, t)
        a('v_lshlrev_b32 v%d, 16, v%d' % (d, d + 2))
        a('v_and_b32 v%d, 0xffff0000, v%d' % (d + 1, d + 2))
        a('v_lshlrev_b32 v%d, 16, v%d' % (d + 2, d + 3))
        a('v_and_b32 v%d, 0xffff0000, v%d' % (d + 3, d + 3))
        for r in range(4):
            a('v_mov_b32 v%d, v%d' % (e + r, d + r))
    a('s_waitcnt vmcnt(12)')
    a('s_barrier')
    if stamps: a('s_memtime s[94:95]')
    for t in range(NT):
        a(rd(0, t, 0)); a(rd(0, t, 1))
    vstep(-2)
    for t in range(NT - 1):
        a(rd(1, t, 0)); a(rd(1, t, 1))
    vstep(-1)
    a('s_mov_b32 s%d, 0' % S_CNT)
    a('s_waitcnt lgkmcnt(0)')
    a.raw('.p2align 4')
    a.label('G2_loop')
    a('s_cmp_eq_u32 s%d, 7' % S_CNT)
    a('s_cbranch_scc1 G2_accsw')
    a.label('G2_accsw_ret')
    for k in range(16):
        fill = {}
        def put(p, ins): fill.setdefault(p, []).extend(ins if isinstance(ins, list) else [ins])
        if k % 2 == 0: a('s_waitcnt vmcnt(12) lgkmcnt(6)')
        else: a('s_waitcnt lgkmcnt(6)')
        if k % 4 == 2: a('s_barrier')
        if k == 6:
            a('s_cmp_eq_u32 s%d, 6' % S_CNT)
            a('s_cbranch_scc1 G2_srdsw')
            a.label('G2_srdsw_ret')
        put(0, rd(k + 1, NT - 1, 0)); put(1, rd(k + 1, NT - 1, 1))
        for t in range(1, NT):
            put(2 * t, rd(k + 2, t - 1, 0)); put(2 * t + 1, rd(k + 2, t - 1, 1))
        if 'noa2' not in OPT:
            put(0, aload((k + 7) % DA, 0)); put(2, aload((k + 7) % DA, 1))
        put(3, adv_a())
        put(4, m0_set((k + 10) % 16))
        if 'nodma2' not in OPT: put(5, dma())
        put(6, adv_b())
        for t in range(NT):
            for i in range(2):
                c = acc(i, t); W = bfrag(k & 1, t); X = afrag(k % DA, i)
                a('%s v[%d:%d], a[%d:%d], a[%d:%d], v[%d:%d]' % (MF, c, c + 3, W, W + 3, X, X + 3, c, c + 3))
                for x in fill.pop(2 * t + i, []): a(x)
        assert not fill
    a('s_add_u32 s%d, s%d, 1' % (S_CNT, S_CNT))
    a('s_cmp_lt_u32 s%d, 9' % S_CNT)
    a('s_cbranch_scc1 G2_loop')
    if stamps: a('s_memtime s[96:97]')
    a('s_mov_b32 s62, 0x%x' % f2u(-math.log2(math.e)))
    for i in range(2):
        for t in range(NT):
            g = SAV + acc(i, t)
            for r in range(4):
                a('v_mul_f32 v%d, s62, v%d' % (T0 + r, g + r))
            for r in range(4):
                a('v_exp_f32 v%d, v%d' % (T0 + r, T0 + r))
            a('s_nop 0')
            for r in range(4):
                a('v_add_f32 v%d, 1.0, v%d' % (T0 + r, T0 + r))
            for r in range(4):
                a('v_rcp_f32 v%d, v%d' % (T0 + r, T0 + r))
            a('s_nop 0')
            for r in range(4):
                a('v_mul_f32 v%d, v%d, v%d' % (g + r, g + r, T0 + r))
    for i in range(2):
        for t in range(NT):
            g = SAV + acc(i, t); sv = acc(i, t); x = XR + (i * NT + t) * 2
            a('v_lshlrev_b32 v%d, 16, v%d' % (T0, x))
            a('v_and_b32 v%d, 0xffff0000, v%d' % (T1, x))
            a('v_lshlrev_b32 v%d, 16, v%d' % (T2, x + 1))
            a('v_and_b32 v%d, 0xffff0000, v%d' % (T3, x + 1))
            for r in range(4):
                a('v_fmac_f32 v%d, v%d, v%d' % (T0 + r, sv + r, g + r))
            a('v_cvt_pk_bf16_f32 v%d, v%d, v%d' % (x, T0, T1))
            a('v_cvt_pk_bf16_f32 v%d, v%d, v%d' % (x + 1, T2, T3))
            a('buffer_store_dwordx2 v[%d:%d], v%d, s[%d:%d], s%d offen offset:%d' % (x, x + 1, V_O, S_OSRD, S_OSRD + 3, S_OOFF2 if i else S_OOFF, t * 32))
    if stamps:
        emit_stamps(a, S_W, 10, 65 * MB, S_ASRD)
    a.label('G2_end')
    a('s_endpgm')
    a.label('G2_accsw')
    for i in range(2):
        for t in range(NT):
            x = XR + (i * NT + t) * 2
            a('buffer_load_dwordx2 v[%d:%d], v%d, s[%d:%d], s%d offen offset:%d' % (x, x + 1, V_O, S_XSRD, S_XSRD + 3, S_OOFF2 if i else S_OOFF, t * 32))
    for r in range(0, 32, 2):
        a('v_pk_mov_b32 v[%d:%d], v[%d:%d], v[%d:%d] op_sel:[0,1]' % (SAV + r, SAV + r + 1, r, r + 1, r, r + 1))
    for r in range(0, 32, 2):
        a('v_pk_mov_b32 v[%d:%d], 0, 0' % (r, r + 1))
    a('s_nop 1')
    a('s_branch G2_accsw_ret')
    a.label('G2_srdsw')
    srd(a, S_WSRD, 6, 7, 1024 * 2048)
    a('s_mov_b32 s%d, 0' % S_BOFF)
    a('s_branch G2_srdsw_ret')
    return name, kd(name, 96 + 96, 96), (256, 256, 65536)

def emit_stamps(a, S_W, S_WS, off, S_SRD, nw_log=2, extra=False):
    a('s_waitcnt vmcnt(0)')
    a('s_memtime s[98:99]')
    a('s_memrealtime s[100:101]')
    a('s_waitcnt lgkmcnt(0)')
    a('s_sub_u32 s94, s94, s92')
    a('s_sub_u32 s96, s96, s92')
    a('s_sub_u32 s98, s98, s92')
    a('v_mov_b32 v0, s90')
    a('v_mov_b32 v1, s94')
    a('v_mov_b32 v2, s96')
    a('v_mov_b32 v3, s98')
    a('v_mov_b32 v4, s100')
    a('s_lshl_b32 s60, s2, %d' % nw_log)
    a('s_add_u32 s60, s60, s%d' % S_W)
    a('s_lshl_b32 s60, s60, 6')
    a('v_mov_b32 v8, s60')
    a('s_add_u32 s62, s%d, %d' % (S_WS, off))
    a('s_addc_u32 s63, s%d, 0' % (S_WS + 1))
    srd(a, S_SRD, 62, 63, 1 * MB)
    a('buffer_store_dwordx4 v[0:3], v8, s[%d:%d], 0 offen' % (S_SRD, S_SRD + 3))
    a('buffer_store_dword v4, v8, s[%d:%d], 0 offen offset:16' % (S_SRD, S_SRD + 3))
    if extra:
        for n in range(4):
            a('s_sub_u32 s%d, s%d, s92' % (70 + 2 * n, 70 + 2 * n))
            a('v_mov_b32 v%d, s%d' % (12 + n, 70 + 2 * n))
        a('buffer_store_dwordx4 v[12:15], v8, s[%d:%d], 0 offen offset:32' % (S_SRD, S_SRD + 3))

SPIN_MAX = 400000
WS_FLAG = 44 * MB
WS_END = 45 * MB
WS_P = 36 * MB
def gen_k3(a, stamps=False):
    name = 'k3_kernel'
    M32 = 'v_mfma_f32_32x32x16_bf16'
    kernel_begin(a, name)
    ACC, SACC, PIN, WF, AF = 0, 64, 96, 128, 160
    V_RD, V_D0, V_D1, V_A, V_O, V_FLAG, V_Z, V_LANE = 224, 226, 227, 228, 229, 230, 231, 232
    V_P, V_B, V_PF = 233, 234, 235
    S_QSRD, S_QOFF, S_QSTR = 52, 56, 59
    T0 = 236
    XR = 240
    BR = 32
    def wfrag(n): return WF + 4 * n
    def afrag(slot, mf): return AF + 8 * slot + 4 * mf
    S_WSRD, S_ASRD, S_XSRD, S_OSRD, S_BSRD, S_FSRD, S_PSRD = 20, 24, 28, 32, 36, 64, 76
    S_W, S_BOFF, S_AOFF, S_T, S_CNT, S_OOFF, S_ROLE, S_TILE = 40, 41, 42, 43, 44, 45, 46, 47
    S_TEND, S_T0, S_RPOS, S_RDELTA, S_FOFF, S_FMINE, S_FPART = 48, 49, 68, 69, 63, 62, 75
    S_POUT, S_PINO, S_COL = 80, 81, 82
    RING = 81920
    a('s_cmp_ge_u32 s2, 256')
    a('s_cbranch_scc1 K3_att')
    a('s_load_dwordx2 s[4:5], s[0:1], %d' % KA_W2)
    a('s_load_dwordx2 s[10:11], s[0:1], %d' % KA_WS)
    a('s_load_dwordx2 s[6:7], s[0:1], %d' % KA_WO)
    a('s_load_dwordx2 s[8:9], s[0:1], %d' % KA_B2)
    a('s_load_dwordx2 s[12:13], s[0:1], %d' % KA_X)
    a('s_load_dwordx2 s[16:17], s[0:1], %d' % KA_OUT)
    if stamps:
        a('s_memrealtime s[90:91]')
        a('s_memtime s[92:93]')
    if OV('gprio0', 3): a('s_setprio %d' % OV('gprio0', 3))
    a('v_lshrrev_b32 v%d, 6, v0' % T0)
    a('v_and_b32 v%d, 63, v0' % V_LANE)
    a('v_readfirstlane_b32 s%d, v%d' % (S_W, T0))
    a('s_and_b32 s50, s2, 7')
    a('s_lshr_b32 s51, s2, 3')
    if OV('map3', 0) == 0:
        a('s_lshr_b32 s%d, s51, 4' % S_ROLE)
        a('s_lshr_b32 s52, s50, 1')
        a('s_lshl_b32 s52, s52, 2')
        a('s_and_b32 s53, s51, 3')
        a('s_add_u32 s52, s52, s53')
        a('s_and_b32 s53, s50, 1')
        a('s_lshl_b32 s53, s53, 2')
        a('s_bfe_u32 s54, s51, 0x20002')
        a('s_add_u32 s53, s53, s54')
    elif OV('map3', 0) == 2:
        a('s_and_b32 s%d, s50, 1' % S_ROLE)
        a('s_lshr_b32 s52, s50, 1')
        a('s_lshl_b32 s52, s52, 2')
        a('s_and_b32 s53, s51, 3')
        a('s_add_u32 s52, s52, s53')
        a('s_lshr_b32 s53, s51, 2')
    else:
        a('s_lshr_b32 s%d, s50, 2' % S_ROLE)
        a('s_bfe_u32 s52, s50, 0x10001')
        a('s_lshl_b32 s52, s52, 3')
        a('s_and_b32 s53, s51, 7')
        a('s_add_u32 s52, s52, s53')
        a('s_and_b32 s53, s50, 1')
        a('s_lshl_b32 s53, s53, 2')
        a('s_lshr_b32 s54, s51, 3')
        a('s_add_u32 s53, s53, s54')
    a('s_lshl_b32 s%d, s52, 3' % S_TILE)
    a('s_add_u32 s%d, s%d, s53' % (S_TILE, S_TILE))
    a('v_lshrrev_b32 v%d, 3, v%d' % (T0, V_LANE))
    a('v_and_b32 v%d, 2, v%d' % (T0 + 1, T0))
    a('v_lshlrev_b32 v%d, 1, v%d' % (T0 + 1, T0 + 1))
    a('v_and_b32 v%d, 7, v%d' % (T0 + 2, V_LANE))
    a('v_xor_b32 v%d, v%d, v%d' % (T0 + 1, T0 + 1, T0 + 2))
    a('v_lshlrev_b32 v%d, 11, v%d' % (T0, T0))
    a('v_lshl_add_u32 v%d, v%d, 4, v%d' % (V_D0, T0 + 1, T0))
    a('s_lshl_b32 s55, s%d, 14' % S_W)
    a('s_lshl_b32 s56, s53, 8')
    a('s_lshl_b32 s57, s%d, 7' % S_ROLE)
    a('s_add_u32 s%d, s56, s57' % S_COL)
    a('s_add_u32 s55, s55, s%d' % S_COL)
    a('v_add_u32 v%d, s55, v%d' % (V_D0, V_D0))
    a('v_xor_b32 v%d, 128, v%d' % (V_D1, V_D0))
    a('v_bfe_u32 v%d, v%d, 4, 1' % (T0, V_LANE))
    a('v_lshlrev_b32 v%d, 10, v%d' % (T0, T0))
    a('v_lshrrev_b32 v%d, 5, v%d' % (T0 + 1, V_LANE))
    a('v_lshl_add_u32 v%d, v%d, 8, v%d' % (T0, T0 + 1, T0))
    a('v_and_b32 v%d, 15, v%d' % (T0 + 2, V_LANE))
    a('v_lshl_add_u32 v%d, v%d, 4, v%d' % (V_A, T0 + 2, T0))
    a('s_mul_i32 s%d, s%d, %d' % (S_BOFF, S_ROLE, 56 * 65536))
    a('s_mul_i32 s%d, s%d, %d' % (S_AOFF, S_ROLE, 56 * 4096))
    a('s_lshl_b32 s%d, s%d, 11' % (S_T0, S_W))
    a('s_mov_b32 s%d, s%d' % (S_T, S_T0))
    a('s_add_u32 s%d, s%d, %d' % (S_TEND, S_T0, RING))
    a('s_lshl_b32 s58, s52, 1')
    a('s_lshr_b32 s59, s%d, 1' % S_W)
    a('s_add_u32 s58, s58, s59')
    a('s_mul_i32 s58, s58, %d' % HO_MG)
    a('s_and_b32 s57, s%d, 1' % S_W)
    a('s_lshl_b32 s57, s57, 11')
    a('s_add_u32 s58, s58, s57')
    a('s_add_u32 s58, s58, %d' % WS_HO)
    a('s_waitcnt lgkmcnt(0)')
    srd(a, S_WSRD, 4, 5, 3584 * 2048)
    a('s_add_u32 s60, s10, s58')
    a('s_addc_u32 s61, s11, 0')
    srd(a, S_ASRD, 60, 61, HO_MG - 2048)
    def m0_set(nb): return 's_add_u32 m0, s%d, %d' % (S_T, nb * 1024)
    def dma(nb): return 'buffer_load_dwordx4 v%d, s[%d:%d], s%d offen%s lds' % (V_D1 if nb else V_D0, S_WSRD, S_WSRD + 3, S_BOFF, FL('w2f'))
    def adv_b(): return ['s_add_u32 s%d, s%d, 65536' % (S_BOFF, S_BOFF), 's_add_u32 s%d, s%d, 8192' % (S_T, S_T)]
    def wrap_b(): return ['s_cmp_eq_u32 s%d, s%d' % (S_T, S_TEND), 's_cselect_b32 s%d, s%d, s%d' % (S_T, S_T0, S_T)]
    def aload(slot, mf):
        b = afrag(slot, mf)
        return 'buffer_load_dwordx4 v[%d:%d], v%d, s[%d:%d], s%d offen offset:%d sc1' % (b, b + 3, V_A, S_ASRD, S_ASRD + 3, S_AOFF, mf * 512)
    def adv_a(): return 's_add_u32 s%d, s%d, 4096' % (S_AOFF, S_AOFF)
    def rd(q, n, s_, dst=None):
        mf, T = n >> 2, n & 3
        b = wfrag(n if dst is None else dst) + 2 * s_
        return 'ds_read_b64_tr_b16 v[%d:%d], v%d offset:%d' % (b, b + 1, V_RD + (T & 1), q * 8192 + (2 * s_ + mf) * 2048 + (T >> 1) * 1024)
    def vstep(v):
        for nb in range(2):
            a(m0_set(nb)); a('s_nop 0'); a(dma(nb))
        for x in adv_b(): a(x)
        a(aload((v + 7) % 8, 0)); a(aload((v + 7) % 8, 1)); a(adv_a())
    vstep(-7); vstep(-6)
    a('v_lshrrev_b32 v%d, 5, v%d' % (T0, V_LANE))
    a('v_bfe_u32 v%d, v%d, 2, 2' % (T0 + 1, V_LANE))
    a('v_lshl_add_u32 v%d, v%d, 2, v%d' % (T0, T0, T0 + 1))
    a('v_lshlrev_b32 v%d, 7, v%d' % (T0, T0))
    a('v_bfe_u32 v%d, v%d, 4, 1' % (T0 + 2, V_LANE))
    a('v_lshl_add_u32 v%d, v%d, 5, v%d' % (T0, T0 + 2, T0))
    a('v_and_b32 v%d, 1, v%d' % (T0 + 2, V_LANE))
    a('v_lshl_add_u32 v%d, v%d, 4, v%d' % (T0, T0 + 2, T0))
    a('v_bfe_u32 v%d, v%d, 1, 1' % (T0 + 2, V_LANE))
    a('v_lshl_add_u32 v%d, v%d, 3, v%d' % (T0, T0 + 2, T0))
    a('v_bfe_u32 v%d, v%d, 3, 1' % (T0 + 2, V_LANE))
    a('v_lshl_add_u32 v%d, v%d, 6, v%d' % (V_RD, T0 + 2, T0))
    a('v_xor_b32 v%d, 64, v%d' % (V_RD + 1, V_RD))
    for r in range(0, 64, 2):
        a('v_pk_mov_b32 v[%d:%d], 0, 0' % (r, r + 1))
    vstep(-5); vstep(-4)
    srd(a, S_BSRD, 8, 9, 2048)
    srd(a, S_XSRD, 12, 13, 4 * MB)
    srd(a, S_OSRD, 16, 17, 4 * MB)
    a('s_add_u32 s60, s10, %d' % WS_FLAG)
    a('s_addc_u32 s61, s11, 0')
    srd(a, S_FSRD, 60, 61, 131072)
    a('s_add_u32 s60, s10, %d' % WS_P)
    a('s_addc_u32 s61, s11, 0')
    srd(a, S_PSRD, 60, 61, 8 * MB)
    a('v_and_b32 v%d, 31, v%d' % (T0, V_LANE))
    a('v_lshlrev_b32 v%d, 2, v%d' % (V_Z, T0))
    a('v_lshlrev_b32 v%d, 11, v%d' % (T0, T0))
    a('v_lshrrev_b32 v%d, 5, v%d' % (T0 + 1, V_LANE))
    a('v_lshl_add_u32 v%d, v%d, 4, v%d' % (V_O, T0 + 1, T0))
    a('v_lshlrev_b32 v%d, 4, v%d' % (V_B, T0 + 1))
    a('v_lshlrev_b32 v%d, 4, v%d' % (V_P, V_LANE))
    a('s_lshl_b32 s57, s52, 18')
    a('s_lshl_b32 s58, s%d, 16' % S_W)
    a('s_add_u32 s57, s57, s58')
    a('s_add_u32 s%d, s57, s%d' % (S_OOFF, S_COL))
    a('s_lshr_b32 s%d, s52, 1' % S_FOFF)
    a('s_lshl_b32 s%d, s%d, 12' % (S_FOFF, S_FOFF))
    a('s_lshl_b32 s57, s%d, 1' % S_TILE)
    a('s_add_u32 s57, s57, s%d' % S_ROLE)
    a('s_lshl_b32 s%d, s57, 8' % S_FMINE)
    a('s_add_u32 s%d, s%d, 65536' % (S_FMINE, S_FMINE))
    a('s_xor_b32 s%d, s%d, 256' % (S_FPART, S_FMINE))
    a('s_lshl_b32 s57, s57, 15')
    a('s_lshl_b32 s58, s%d, 13' % S_W)
    a('s_add_u32 s%d, s57, s58' % S_POUT)
    a('s_xor_b32 s%d, s%d, 32768' % (S_PINO, S_POUT))
    PF = 'nopf3' not in OPT
    PD = OV('pd', 2)
    if PF:
        assert OV('map3', 0) == 0
        a('s_mov_b32 s18, s52')
        a('s_mov_b32 s19, s53')
        a('s_cmp_ge_u32 s%d, 2' % S_W)
        a('s_cbranch_scc1 K3_pfw')
        a('s_lshl_b32 s57, s18, 1')
        a('s_add_u32 s57, s57, s%d' % S_W)
        a('s_mul_i32 s57, s57, %d' % HO_MG)
        a('s_add_u32 s57, s57, %d' % WS_HO)
        a('s_add_u32 s60, s10, s57')
        a('s_addc_u32 s61, s11, 0')
        srd(a, S_QSRD, 60, 61, 112 * 4096)
        a('s_and_b32 s57, s19, 3')
        a('s_lshl_b32 s57, s57, 13')
        a('s_mul_i32 s%d, s%d, %d' % (S_QOFF, S_ROLE, 56 * 4096))
        a('s_add_u32 s%d, s%d, s57' % (S_QOFF, S_QOFF))
        a('s_mov_b32 s%d, 32768' % S_QSTR)
        a('v_lshlrev_b32 v%d, 7, v%d' % (V_PF, V_LANE))
        a('s_branch K3_pfd')
        a.label('K3_pfw')
        srd(a, S_QSRD, 4, 5, 3584 * 2048)
        a('s_and_b32 s57, s18, 3')
        a('s_lshl_b32 s57, s57, 1')
        a('s_add_u32 s57, s57, s%d' % S_W)
        a('s_sub_u32 s57, s57, 2')
        a('s_lshl_b32 s57, s57, 16')
        a('s_mul_i32 s%d, s%d, %d' % (S_QOFF, S_ROLE, 56 * 65536))
        a('s_add_u32 s%d, s%d, s57' % (S_QOFF, S_QOFF))
        a('s_lshl_b32 s57, s19, 8')
        a('s_add_u32 s%d, s%d, s57' % (S_QOFF, S_QOFF))
        a('s_mov_b32 s%d, 524288' % S_QSTR)
        a('v_lshrrev_b32 v%d, 1, v%d' % (T0, V_LANE))
        a('v_lshlrev_b32 v%d, 11, v%d' % (T0, T0))
        a('v_and_b32 v%d, 1, v%d' % (T0 + 1, V_LANE))
        a('v_lshl_add_u32 v%d, v%d, 7, v%d' % (V_PF, T0 + 1, T0))
        a.label('K3_pfd')
        a('s_add_u32 s%d, s%d, s%d' % (S_QOFF, S_QOFF, S_QSTR))
    def pf():
        return ['buffer_load_dword v%d, v%d, s[%d:%d], s%d offen%s' % (T0 + 3, V_PF, S_QSRD, S_QSRD + 3, S_QOFF, FL('pf3f')),
                's_add_u32 s%d, s%d, s%d' % (S_QOFF, S_QOFF, S_QSTR)]
    a('s_waitcnt vmcnt(8)')
    a('s_barrier')
    if stamps: a('s_memtime s[94:95]')
    for n in range(8):
        a(rd(0, n, 0)); a(rd(0, n, 1))
        if n == 3: a('s_waitcnt lgkmcnt(2)')
    vstep(-3); vstep(-2); vstep(-1)
    if PF:
        for i in range(PD - 1):
            for x in pf(): a(x)
    a('s_mov_b32 s%d, 0' % S_CNT)
    a('s_mov_b32 s%d, 0' % S_RPOS)
    a('s_mov_b32 s70, 0x%x' % ((-(RING - 16384)) & 0xffffffff))
    a('s_mov_b32 s71, 16384')
    a('s_setprio %d' % OV('gprio', 0))
    a('s_waitcnt lgkmcnt(0)')
    a.raw('.p2align 4')
    a.label('K3_loop')
    for k in range(8):
        odd = k & 1
        fill = {}
        def put(p, ins): fill.setdefault(p, []).extend(ins if isinstance(ins, list) else [ins])
        if odd:
            a('s_waitcnt vmcnt(16)')
            a('s_barrier')
            a('v_add_u32 v%d, s%d, v%d' % (V_RD, S_RDELTA, V_RD))
            a('v_add_u32 v%d, s%d, v%d' % (V_RD + 1, S_RDELTA, V_RD + 1))
        if k == 1:
            a('s_cmp_eq_u32 s%d, 6' % S_CNT)
            a('s_cbranch_scc1 K3_osw')
            a.label('K3_osw_ret')
            if 'oswst' in OPT: a('s_memtime s[86:87]')
        if k == 1 and PF:
            a('s_cmp_eq_u32 s%d, %d' % (S_CNT, 7 - PD))
            a('s_cbranch_scc1 K3_pfwo')
            a.label('K3_pfwo_ret')
            put(0, pf())
        if k == 4 and 'xlate' not in OPT:
            a('s_cmp_lt_u32 s%d, 4' % S_CNT)
            a('s_cbranch_scc1 K3_xl')
            a.label('K3_xl_ret')
        if k == 6:
            a('s_cmp_eq_u32 s%d, 5' % S_CNT)
            a('s_cbranch_scc1 K3_fl')
            a.label('K3_fl_ret')
        for n in range(8):
            put(n, [rd(1 - odd, n, 0), rd(1 - odd, n, 1)])
        put(0, m0_set(0));
        if 'nodma2' not in OPT: put(1, dma(0))
        put(2, m0_set(1))
        if 'nodma2' not in OPT: put(3, dma(1))
        put(3, adv_b()[0]); put(4, adv_b()[1]); put(4, wrap_b())
        if 'noa2' not in OPT:
            put(5, aload((k + 7) % 8, 0)); put(6, aload((k + 7) % 8, 1))
        put(7, adv_a())
        if not odd:
            put(6, ['s_add_u32 s%d, s%d, 1' % (S_RPOS, S_RPOS), 's_cmp_eq_u32 s%d, 5' % S_RPOS,
                    's_cselect_b32 s%d, s70, s71' % S_RDELTA, 's_cselect_b32 s%d, 0, s%d' % (S_RPOS, S_RPOS)])
        for n in range(8):
            if n % 2 == 0: a('s_waitcnt lgkmcnt(12)')
            mf, T = n >> 2, n & 3
            c = ACC + 16 * T; W = wfrag(n); X = afrag(k, mf)
            a('%s v[%d:%d], v[%d:%d], v[%d:%d], v[%d:%d]' % (M32, c, c + 15, W, W + 3, X, X + 3, c, c + 15))
            for x in fill.pop(n, []): a(x)
        assert not fill
    a('s_add_u32 s%d, s%d, 1' % (S_CNT, S_CNT))
    a('s_cmp_lt_u32 s%d, 7' % S_CNT)
    a('s_cbranch_scc1 K3_loop')
    if stamps: a('s_memtime s[96:97]')
    vq = []
    for j in range(0, 7):
        vq += [('D', j), ('Dx', j), ('A', j), ('A', j)]
    def need(tags):
        idx = [i for i, t in enumerate(vq) if t in tags]
        assert len(set(vq[i] for i in idx)) == len(set(tags)), (tags, vq)
        return len(vq) - 1 - max(idx)
    ST0, STS = OV('st0', 0), OV('sts', 1)
    FSTEP = OV('fstep', 5)
    PFL, PCHK = OV('pfl', 12), OV('pchk', 16)
    XB = OV('xb', 6); XW = OV('xw', 9)
    BRAW = ACC + 32 if 'xlate' in OPT else PIN
    c_nl2e = 's72'
    PB = 'pbf16' in OPT
    early = []
    XU = ACC + 32
    for e in range(16):
        early.append('v_lshlrev_b32 v%d, 16, v%d' % (T0, BRAW + e))
        early.append('v_and_b32 v%d, 0xffff0000, v%d' % (T0 + 1, BRAW + e))
        early.append('v_add_f32 v%d, v%d, v%d' % (2 * e, 2 * e, T0))
        early.append('v_add_f32 v%d, v%d, v%d' % (2 * e + 1, 2 * e + 1, T0 + 1))
    for e in range(16):
        early.append('v_lshlrev_b32 v%d, 16, v%d' % (XU + 2 * e, XR + e))
        early.append('v_and_b32 v%d, 0xffff0000, v%d' % (XU + 2 * e + 1, XR + e))
    late = []
    for u in range(4):
        g = 8 * u; p = PIN + 8 * u
        blk = []
        if PB:
            for r in range(4):
                raw = PIN + 16 + 4 * u + r
                blk.append('v_lshlrev_b32 v%d, 16, v%d' % (p + 2 * r, raw))
                blk.append('v_and_b32 v%d, 0xffff0000, v%d' % (p + 2 * r + 1, raw))
        for r in range(8): blk.append('v_add_f32 v%d, v%d, v%d' % (g + r, g + r, p + r))
        for r in range(8): blk.append('v_mul_f32 v%d, %s, v%d' % (p + r, c_nl2e, g + r))
        for r in range(8): blk.append('v_exp_f32 v%d, v%d' % (p + r, p + r))
        for r in range(8): blk.append('v_add_f32 v%d, 1.0, v%d' % (p + r, p + r))
        for r in range(8): blk.append('v_rcp_f32 v%d, v%d' % (p + r, p + r))
        for r in range(8): blk.append('v_mul_f32 v%d, v%d, v%d' % (g + r, g + r, p + r))
        late.append((('P', u), blk))
    a('s_mov_b32 s72, 0x%x' % f2u(-math.log2(math.e)))
    stage = 28
    early_steps = list(range(XB + XW, PCHK + 5)) if 'xlate' in OPT else list(range(FSTEP + 1, PCHK))
    late_steps = list(range(PCHK + OV('lw', 5), 32))
    late_flat = []
    for tag, blk in late:
        late_flat.append(('W', tag))
        late_flat += blk
    VPS = OV('vps', 18)
    for j in range(32):
        odd = j & 1
        fill = {0: [], 1: [], 2: [], 3: []}
        tags = set()
        if odd:
            for jj in (j + 1, j + 2):
                if jj < 32: tags.add(('D', jj))
            for jj in (j, j + 1):
                if jj < 32: tags.add(('A', jj))
        if 'xlate' in OPT and j == XB + XW: tags |= {('X', 0), ('B', 0)}
        if j == FSTEP:
            a('s_waitcnt vmcnt(0)')
        elif tags:
            a('s_waitcnt vmcnt(%d)' % need(tags))
        if odd and j + 1 < 32:
            a('s_barrier')
            ns = stage + 1
            delta = ((ns % 5) - (stage % 5)) * 16384
            stage = ns
            a('v_add_u32 v%d, 0x%x, v%d' % (V_RD, delta & 0xffffffff, V_RD))
            a('v_add_u32 v%d, 0x%x, v%d' % (V_RD + 1, delta & 0xffffffff, V_RD + 1))
        if j == FSTEP:
            a('s_cmp_lg_u32 s%d, 0' % S_W)
            a('s_cbranch_scc1 K3_nofl')
            a('v_mov_b32 v%d, 1' % T0)
            a('buffer_store_dword v%d, v%d, s[%d:%d], s%d offen sc1' % (T0, V_Z, S_FSRD, S_FSRD + 3, S_FMINE))
            a.label('K3_nofl')
        if j == PCHK:
            a('s_waitcnt vmcnt(%d)' % need({('F', 0)}))
            a('v_cmp_eq_u32 vcc, 1, v%d' % V_FLAG)
            a('s_nop 1')
            a('s_cmp_eq_u64 vcc, -1')
            a('s_cbranch_scc0 K3_pspin')
            a.label('K3_pgo')
        if stamps:
            pts = [int(x) for x in (FL('pts').strip() or '8,12,20,24').split(',')]
            if j in pts: a('s_memtime s[%d:%d]' % (84 + 2 * pts.index(j) if pts.index(j) < 3 else 14, 85 + 2 * pts.index(j) if pts.index(j) < 3 else 15))
        par = j & 1
        def oset(par_, mf, T): return mf * 4 + T + 2 * par_
        if j + 1 < 32:
            rds = []
            for mf in range(2):
                for T in range(2):
                    for s_ in range(2):
                        rds.append(rd(1 - odd, mf * 4 + T, s_, dst=oset(1 - par, mf, T)))
            fill[0] += rds[0:3]; fill[1] += rds[3:6]; fill[2] += rds[6:8]
        vm = []
        if j + 7 < 32:
            slot = (56 + j + 7) % 10
            fill[0].append('s_add_u32 m0, s%d, %d' % (S_T0, slot * 8192))
            vm.append((1, ('D', j + 7), [dma(0), adv_b()[0]]))
            vm.append((2, ('A', j + 7), [aload((j + 7) % 8, 0)]))
            vm.append((3, ('A', j + 7), [aload((j + 7) % 8, 1), adv_a()]))
        SPS = OV('sps', 8)
        if PB and j == 0:
            for e in range(4):
                cv = ['v_cvt_pk_bf16_f32 v%d, v%d, v%d' % (ACC + 32 + 4 * e + r, ACC + 32 + 8 * e + 2 * r, ACC + 33 + 8 * e + 2 * r) for r in range(4)]
                vm.append((1 + e * 3 // 4, ('S', e), cv + ['buffer_store_dwordx4 v[%d:%d], v%d, s[%d:%d], s%d offen offset:%d sc1' %
                           (ACC + 32 + 4 * e, ACC + 35 + 4 * e, V_P, S_PSRD, S_PSRD + 3, S_POUT, e * 1024)]))
        for e in range(j * SPS, min(8, (j + 1) * SPS)) if not PB else []:
            pre = ['s_add_u32 s57, s%d, 4096' % S_POUT] if e == 4 else []
            vm.append((3 if SPS < 4 else 1 + (e % SPS) * 3 // SPS, ('S', e), pre + ['buffer_store_dwordx4 v[%d:%d], v%d, s[%d:%d], s%d offen offset:%d sc1' %
                       (ACC + 32 + 4 * e, ACC + 35 + 4 * e, V_P, S_PSRD, S_PSRD + 3, 57 if e >= 4 else S_POUT, (e % 4) * 1024)]))
        if 'xlate' in OPT and XB <= j < XB + 4:
            u = j - XB
            vm.append((3, ('B', 0), ['buffer_load_dwordx4 v[%d:%d], v%d, s[%d:%d], s%d offen offset:%d' % (BRAW + 4 * u, BRAW + 4 * u + 3, V_B, S_BSRD, S_BSRD + 3, S_COL, u * 32)]))
            vm.append((3, ('X', 0), ['buffer_load_dwordx4 v[%d:%d], v%d, s[%d:%d], s%d offen offset:%d' % (XR + 4 * u, XR + 4 * u + 3, V_O, S_XSRD, S_XSRD + 3, S_OOFF, u * 32)]))
        if j == PFL:
            vm.append((3, ('F', 0), ['buffer_load_dword v%d, v%d, s[%d:%d], s%d offen sc1' % (V_FLAG, V_Z, S_FSRD, S_FSRD + 3, S_FPART)]))
        if PB and PCHK <= j < PCHK + 2:
            for h in range(2):
                u = 2 * (j - PCHK) + h
                vm.append((h, ('P', u), ['buffer_load_dwordx4 v[%d:%d], v%d, s[%d:%d], s%d offen offset:%d sc1' %
                           (PIN + 16 + 4 * u, PIN + 19 + 4 * u, V_P, S_PSRD, S_PSRD + 3, S_PINO, u * 1024)]))
        if not PB and PCHK <= j < PCHK + 4:
            u = j - PCHK
            pre = ['s_add_u32 s57, s%d, 4096' % S_PINO] if u == 2 else []
            for h in range(2):
                e = 2 * u + h
                vm.append((h, ('P', u), (pre if h == 0 else []) + ['buffer_load_dwordx4 v[%d:%d], v%d, s[%d:%d], s%d offen offset:%d sc1' %
                           (PIN + 4 * e, PIN + 4 * e + 3, V_P, S_PSRD, S_PSRD + 3, 57 if e >= 4 else S_PINO, (e % 4) * 1024)]))
        sh = []
        if j in early_steps:
            n = -(-len(early) // (early_steps[-1] - j + 1))
            sh = early[:n]; early = early[n:]
        if j in late_steps:
            sh = late_flat[:VPS]; late_flat = late_flat[VPS:]
        a('s_waitcnt lgkmcnt(0)') if j > 0 else a('s_waitcnt lgkmcnt(4)')
        for g in range(4):
            mf, T = g >> 1, g & 1
            c = SACC + 16 * T; W = wfrag(oset(par, mf, T)); X = afrag(j % 8, mf)
            cs = '0' if (j == 0 and mf == 0) else 'v[%d:%d]' % (c, c + 15)
            a('%s v[%d:%d], v[%d:%d], v[%d:%d], %s' % (M32, c, c + 15, W, W + 3, X, X + 3, cs))
            for x in fill[g]: a(x)
            for (gg, tag, ins) in vm:
                if gg == g:
                    for x in ins: a(x)
                    vq.append(tag)
            lo = g * len(sh) // 4; hi = (g + 1) * len(sh) // 4
            for x in sh[lo:hi]:
                if isinstance(x, tuple): a('s_waitcnt vmcnt(%d)' % need({x[1]}))
                else: a(x)
    assert not early
    for x in late_flat:
        if isinstance(x, tuple): a('s_waitcnt vmcnt(%d)' % need({x[1]}))
        else: a(x)
    a('s_nop 7')
    a('s_nop 3')
    for u in range(4):
        g = 8 * u
        for r in range(8):
            a('v_fmac_f32 v%d, v%d, v%d' % (XU + g + r, g + r, SACC + g + r))
        for r in range(4):
            a('v_cvt_pk_bf16_f32 v%d, v%d, v%d' % (XR + 4 * u + r, XU + g + 2 * r, XU + g + 2 * r + 1))
        a('buffer_store_dwordx4 v[%d:%d], v%d, s[%d:%d], s%d offen offset:%d%s' % (XR + 4 * u, XR + 4 * u + 3, V_O, S_OSRD, S_OSRD + 3, S_OOFF, u * 32, FL('s3f')))
    if stamps:
        a('s_waitcnt lgkmcnt(0)')
        a('s_mov_b32 s70, s84'); a('s_mov_b32 s72, s86'); a('s_mov_b32 s74, s88'); a('s_mov_b32 s76, s14')
        emit_stamps(a, S_W, 10, 65 * MB, S_ASRD, extra=True)
    a('s_endpgm')
    def spin(lbl, foff, ret):
        a.label(lbl)
        a('s_mov_b32 s74, 0')
        a.label(lbl + '_l')
        a('s_sleep %d' % OV('slp', 4))
        a('buffer_load_dword v%d, v%d, s[%d:%d], s%d offen sc1' % (V_FLAG, V_Z, S_FSRD, S_FSRD + 3, foff))
        a('s_add_u32 s74, s74, 1')
        a('s_cmp_gt_u32 s74, %d' % SPIN_MAX)
        a('s_cbranch_scc1 %s' % ret)
        a('s_waitcnt vmcnt(0)')
        a('v_cmp_eq_u32 vcc, 1, v%d' % V_FLAG)
        a('s_nop 1')
        a('s_cmp_eq_u64 vcc, -1')
        a('s_cbranch_scc0 %s_l' % lbl)
        a('s_branch %s' % ret)
    spin('K3_pspin', S_FPART, 'K3_pgo')
    spin('K3_ospin', S_FOFF, 'K3_osw_ret')
    if 'xlate' not in OPT:
        a.label('K3_xl')
        for u in range(4):
            if u < 3:
                a('s_cmp_lg_u32 s%d, %d' % (S_CNT, u))
                a('s_cbranch_scc1 K3_xl%d' % u)
            a('buffer_load_dwordx4 v[%d:%d], v%d, s[%d:%d], s%d offen offset:%d' % (XR + 4 * u, XR + 4 * u + 3, V_O, S_XSRD, S_XSRD + 3, S_OOFF, u * 32))
            if u == 3:
                for w_ in range(4):
                    a('buffer_load_dwordx4 v[%d:%d], v%d, s[%d:%d], s%d offen offset:%d' % (BRAW + 4 * w_, BRAW + 4 * w_ + 3, V_B, S_BSRD, S_BSRD + 3, S_COL, w_ * 32))
            a('s_branch K3_xl_ret')
            if u < 3: a.label('K3_xl%d' % u)
    a.label('K3_fl')
    a('buffer_load_dword v%d, v%d, s[%d:%d], s%d offen sc1' % (V_FLAG, V_Z, S_FSRD, S_FSRD + 3, S_FOFF))
    a('s_branch K3_fl_ret')
    if PF:
        a.label('K3_pfwo')
        srd(a, S_QSRD, 6, 7, 1024 * 2048)
        a('s_and_b32 s57, s18, 3')
        a('s_lshl_b32 s58, s%d, 2' % S_W)
        a('s_add_u32 s57, s57, s58')
        a('s_lshl_b32 s57, s57, 17')
        a('s_add_u32 s%d, s57, s%d' % (S_QOFF, S_COL))
        a('s_mov_b32 s%d, 0x1000000' % S_QSTR)
        a('v_lshlrev_b32 v%d, 11, v%d' % (V_PF, V_LANE))
        a('s_branch K3_pfwo_ret')
    a.label('K3_osw')
    if 'oswst' in OPT: a('s_memtime s[84:85]')
    srd(a, S_WSRD, 6, 7, 1024 * 2048)
    a('s_mov_b32 s%d, 0' % S_BOFF)
    a('s_mov_b32 s%d, %d' % (S_AOFF, 112 * 4096))
    a('v_mov_b32 v%d, 0x7fff0000' % V_D1)
    if PF:
        a('s_lshl_b32 s57, s18, 1')
        a('s_and_b32 s58, s%d, 1' % S_W)
        a('s_add_u32 s57, s57, s58')
        a('s_mul_i32 s57, s57, %d' % HO_MG)
        a('s_add_u32 s57, s57, %d' % (WS_HO + 112 * 4096))
        a('s_add_u32 s60, s10, s57')
        a('s_addc_u32 s61, s11, 0')
        srd(a, S_QSRD, 60, 61, 32 * 4096)
        a('s_and_b32 s57, s19, 3')
        a('s_lshl_b32 s57, s57, 1')
        a('s_add_u32 s57, s57, s%d' % S_ROLE)
        a('s_lshr_b32 s58, s%d, 1' % S_W)
        a('s_lshl_b32 s58, s58, 3')
        a('s_add_u32 s57, s57, s58')
        a('s_lshl_b32 s%d, s57, 13' % S_QOFF)
        a('v_lshlrev_b32 v%d, 7, v%d' % (V_PF, V_LANE))
    a('s_waitcnt vmcnt(12)')
    a('v_cmp_eq_u32 vcc, 1, v%d' % V_FLAG)
    a('s_nop 1')
    a('s_cmp_eq_u64 vcc, -1')
    a('s_cbranch_scc0 K3_ospin')
    a('s_branch K3_osw_ret')
    a.label('K3_att')
    att_body(a, stamps)
    return name, kd(name, 256, 256), (512, 256, RING)

def att_body(a, stamps):
    VOFF = 32768
    QA = 144
    Q = [8, 12]
    def KB(b, T): return 16 + 8 * b + 4 * T
    def VB(b, d): return 32 + 8 * b + 4 * d
    def S(par, T, q): return 48 + 16 * par + (q * 2 + T) * 4
    def P(par, q): return 80 + 8 * par + 4 * q
    def O(q, d): return 96 + 12 * q + 4 * d
    ONES, MC, ML, Z, ML1 = 120, 124, 128, 132, 136
    M = [140, 141]; VKA = 142
    def CM(q): return 160 + 4 * q
    def CC(q): return 168 + 4 * q
    def CL(q): return 176 + 4 * q
    VL16 = 1
    NEG = f2u(-1e30)
    a('s_cmp_ge_u32 s2, 512')
    a('s_cbranch_scc1 AT_end')
    a('s_load_dwordx2 s[6:7], s[0:1], %d' % KA_WS)
    a('s_load_dwordx2 s[4:5], s[0:1], %d' % KA_B2)
    if stamps:
        a('s_memrealtime s[90:91]')
        a('s_memtime s[92:93]')
    pr = OV('attprio', 3)
    if OV('attprio0', 3): a('s_setprio %d' % OV('attprio0', 3))
    a('v_lshrrev_b32 v2, 6, v0')
    a('v_and_b32 v3, 63, v0')
    a('v_readfirstlane_b32 s20, v2')
    a('v_lshlrev_b32 v%d, 4, v3' % VL16)
    a('s_and_b32 s21, s2, 7')
    a('s_lshl_b32 s21, s21, 2')
    a('s_bfe_u32 s22, s2, 0x20003')
    a('s_add_u32 s21, s21, s22')
    a('s_bfe_u32 s22, s2, 0x30005')
    a('s_lshl_b32 s23, s21, 17')
    a('s_lshl_b32 s24, s22, 14')
    a('s_add_u32 s23, s23, s24')
    a('s_lshl_b32 s25, s20, 11')
    a('s_add_u32 s25, s25, s23')
    a('s_add_u32 s25, s25, %d' % WS_QK)
    a('s_add_u32 s35, s25, 8192')
    a('s_lshl_b32 s26, s20, 13')
    a('s_add_u32 s27, s23, s26')
    a('s_waitcnt lgkmcnt(0)')
    srd(a, 8, 6, 7, WS_END)
    if 'noatt' in OPT:
        a('s_memtime s[94:95]')
        a('s_branch AT_skip')
    def dmas(base, lo):
        for hf in range(2):
            a('s_add_u32 s28, s27, %d' % (base + hf * 4096))
            a('s_add_u32 m0, s26, %d' % (lo + hf * 4096))
            a('s_nop 0')
            for e in range(4):
                a('buffer_load_dwordx4 v%d, s[8:11], s28 offen offset:%d lds' % (VL16, e * 1024))
    for q in range(2):
        a('buffer_load_dwordx4 v[%d:%d], v%d, s[8:11], s25 offen offset:%d' % (QA + 4 * q, QA + 4 * q + 3, VL16, q * 1024))
    dmas(WS_QK + 4 * MB - 16384, 0)
    dmas(WS_VT - 16384, VOFF)
    for q in range(2):
        a('buffer_load_dwordx4 v[%d:%d], v%d, s[8:11], s35 offen offset:%d' % (QA + 8 + 4 * q, QA + 8 + 4 * q + 3, VL16, q * 1024))
    a('v_and_b32 v4, 15, v3')
    a('v_lshrrev_b32 v5, 4, v3')
    a('v_lshlrev_b32 v5, 2, v5')
    a('v_mov_b32 v6, 0x%x' % NEG)
    for r in range(4):
        a('v_add_u32 v7, %d, v5' % r)
        a('v_cmp_le_u32 vcc, v7, v4')
        a('s_nop 1')
        a('v_cndmask_b32 v%d, v6, 0, vcc' % (MC + r))
        a('v_cndmask_b32 v%d, 0, v6, vcc' % (ML + r))
        a('v_mov_b32 v%d, 0x3f803f80' % (ONES + r))
    a('s_mov_b32 s36, s20')
    a('s_waitcnt vmcnt(10)')
    a('s_barrier')
    a('s_setprio %d' % pr)
    if stamps: a('s_memtime s[94:95]')
    a.label('AT_task')
    a('s_lshl_b32 s31, s36, 11')
    a('v_add_u32 v%d, s31, v%d' % (VKA, VL16))
    def rdK(j, b):
        return ['ds_read_b128 v[%d:%d], v%d offset:%d' % (KB(b, T), KB(b, T) + 3, VKA, (8 - j) * 2048 + T * 1024) for T in range(2)]
    def rdV(j, b):
        return ['ds_read_b128 v[%d:%d], v%d offset:%d' % (VB(b, d), VB(b, d) + 3, VKA, VOFF + (8 - j) * 2048 + d * 1024) for d in range(2)]
    for j in range(3):
        for x in rdK(j, j): a(x)
    for r in range(8):
        a('v_mov_b32 v%d, v%d' % (Q[0] + r, QA + r))
    for r in range(4):
        a('v_mov_b32 v%d, 0' % (Z + r))
        a('v_mov_b32 v%d, v%d' % (ML1 + r, ML + r))
    for q in range(2):
        a('v_mov_b32 v%d, v6' % M[q])
    a('s_add_u32 s30, s36, 1')
    a('s_cmp_eq_u32 s22, 0')
    a('s_cselect_b32 s30, s30, 9')
    def tiles(j):
        t = [(0, 0), (1, 0), (0, 1), (1, 1)]
        if j == 0: t.remove((1, 0))
        if j == 8: t.remove((0, 1))
        return t
    def creg(j, T, q, p2):
        if j == 0 and T == q: return CC(q) if p2 else MC
        if j == 8 and T == q: return CL(q) if p2 else ML1
        return CM(q) if p2 else Z
    def mfS(j, kb, p2):
        r = []
        for (T, q) in tiles(j):
            d = S(j & 1, T, q); c = creg(j, T, q, p2)
            r.append('%s v[%d:%d], v[%d:%d], v[%d:%d], v[%d:%d]' % (MF, d, d + 3, KB(kb, T), KB(kb, T) + 3, Q[q], Q[q] + 3, c, c + 3))
        return r
    def chk(j, p2):
        a('s_cmp_eq_u32 s30, %d' % j)
        a('s_cbranch_scc1 AT_inv%d_%d' % (p2, j))
        a.label('AT_inv%d_%d_ret' % (p2, j))
    def interleave(ms, vs, lead=0):
        n = len(ms)
        if n == 0:
            for x in vs: a(x)
            return
        for g, m in enumerate(ms):
            a(m)
            lo = g * len(vs) // n; hi = (g + 1) * len(vs) // n
            for x in vs[lo:hi]: a(x)
    for j in range(10):
        ms = []
        if j <= 8:
            if j >= 1: chk(j, 0)
            younger = 2 * (min(j + 2, 8) - j)
            a('s_waitcnt lgkmcnt(%d)' % younger)
            ms = mfS(j, j % 4, 0)
        vs = []
        if j >= 1:
            for (T, q) in tiles(j - 1):
                b = S((j - 1) & 1, T, q)
                vs.append('v_max3_f32 v%d, v%d, v%d, v%d' % (M[q], M[q], b, b + 1))
                vs.append('v_max3_f32 v%d, v%d, v%d, v%d' % (M[q], M[q], b + 2, b + 3))
        else:
            vs = ['v_mov_b32 v%d, 0' % (O(0, 0) + r) for r in range(8)]
        if j + 3 <= 8: vs = rdK(j + 3, (j + 3) % 4) + vs
        if j == 9:
            vs = rdK(0, 0) + rdK(1, 1) + ['v_mov_b32 v%d, 0' % (O(0, 0) + r) for r in range(8, 24)] + vs
        interleave(ms, vs)
    for q in range(2):
        a('v_mov_b32 v%d, v%d' % (4 + q, M[q]))
    a('s_nop 0')
    for q in range(2):
        a('v_permlane16_swap_b32 v%d, v%d' % (M[q], 4 + q))
    a('s_nop 0')
    for q in range(2):
        a('v_max_f32 v%d, v%d, v%d' % (M[q], M[q], 4 + q))
    for q in range(2):
        a('v_mov_b32 v%d, v%d' % (4 + q, M[q]))
    a('s_nop 0')
    for q in range(2):
        a('v_permlane32_swap_b32 v%d, v%d' % (M[q], 4 + q))
    a('s_nop 0')
    for q in range(2):
        a('v_max_f32 v%d, v%d, v%d' % (M[q], M[q], 4 + q))
    for q in range(2):
        for r in range(4):
            a('v_sub_f32 v%d, v%d, v%d' % (CC(q) + r, MC + r, M[q]))
        for r in range(4):
            a('v_sub_f32 v%d, 0, v%d' % (CM(q) + r, M[q]))
    a('s_cmp_ge_u32 s36, 4')
    a('s_cbranch_scc1 AT_vok')
    a('s_waitcnt vmcnt(0)')
    a('s_barrier')
    srd(a, 12, 4, 5, 2048)
    a('v_lshlrev_b32 v7, 5, v3')
    a('buffer_load_dword v7, v7, s[12:15], 0 offen')
    a.label('AT_vok')
    a('s_waitcnt lgkmcnt(2)')
    vs = []
    for q in range(2):
        for r in range(4):
            vs.append('v_sub_f32 v%d, v%d, v%d' % (CL(q) + r, ML + r, M[q]))
    vs += ['v_mov_b32 v%d, v%d' % (QA + r, QA + 8 + r) for r in range(8)]
    interleave(mfS(0, 0, 1), vs)
    for j in range(10):
        ms = []
        pre = []
        if j + 2 <= 8: pre += rdK(j + 2, j % 2)
        if j <= 8: pre += rdV(j, j % 2)
        if j + 1 <= 8: chk(j + 1, 1)
        for x in pre: a(x)
        a('s_waitcnt lgkmcnt(%d)' % len(pre))
        if j + 1 <= 8: ms += mfS(j + 1, (j + 1) % 2, 1)
        if j >= 1:
            for q in range(2):
                for d in range(3):
                    o = O(q, d); src = VB((j - 1) % 2, d) if d < 2 else ONES; p = P((j - 1) & 1, q)
                    ms.append('%s v[%d:%d], v[%d:%d], v[%d:%d], v[%d:%d]' % (MF, o, o + 3, src, src + 3, p, p + 3, o, o + 3))
        vs = []
        if j <= 8:
            tl = tiles(j)
            ex = {}
            for (T, q) in tl:
                b = S(j & 1, T, q)
                ex[(T, q)] = ['v_exp_f32 v%d, v%d' % (b + r, b + r) for r in range(4)]
            def cv(T, q):
                p = P(j & 1, q) + 2 * T
                if (T, q) not in tl:
                    return ['v_mov_b32 v%d, 0' % p, 'v_mov_b32 v%d, 0' % (p + 1)]
                b = S(j & 1, T, q)
                return ['v_cvt_pk_bf16_f32 v%d, v%d, v%d' % (p, b, b + 1), 'v_cvt_pk_bf16_f32 v%d, v%d, v%d' % (p + 1, b + 2, b + 3)]
            for (T, q) in tl: vs += ex[(T, q)]
            for q in range(2):
                for T in range(2): vs += cv(T, q)
        if j == 9:
            a('s_nop 0')
        interleave(ms, vs)
    a('s_lshl_b32 s33, s22, 2')
    a('s_lshr_b32 s34, s36, 1')
    a('s_add_u32 s33, s33, s34')
    a('s_mul_i32 s33, s33, %d' % HO_MG)
    a('s_lshl_b32 s34, s21, 12')
    a('s_add_u32 s33, s33, s34')
    a('s_and_b32 s34, s36, 1')
    a('s_lshl_b32 s34, s34, 11')
    a('s_add_u32 s33, s33, s34')
    a('s_add_u32 s33, s33, %d' % (WS_HO + 112 * 4096))
    for q in range(2):
        a('v_rcp_f32 v%d, v%d' % (4 + q, O(q, 2)))
    for q in range(2):
        b = O(q, 0)
        for r in range(8):
            a('v_mul_f32 v%d, v%d, v%d' % (b + r, b + r, 4 + q))
        for r in range(4):
            a('v_cvt_pk_bf16_f32 v%d, v%d, v%d' % (P(0, q) + r, b + 2 * r, b + 2 * r + 1))
        a('buffer_store_dwordx4 v[%d:%d], v%d, s[8:11], s33 offen offset:%d sc1' % (P(0, q), P(0, q) + 3, VL16, q * 1024))
    a('s_add_u32 s36, s36, 4')
    a('s_cmp_lt_u32 s36, 8')
    a('s_cbranch_scc1 AT_task')
    a.label('AT_skip')
    if stamps: a('s_memtime s[96:97]')
    a('s_waitcnt vmcnt(0)')
    a('s_barrier')
    a('s_cmp_lg_u32 s20, 0')
    a('s_cbranch_scc1 AT_fin')
    a('v_mov_b32 v7, 1')
    a('v_mov_b32 v5, 0')
    a('s_lshl_b32 s34, s22, 12')
    a('s_lshl_b32 s33, s21, 2')
    a('s_add_u32 s34, s34, s33')
    a('s_add_u32 s34, s34, %d' % WS_FLAG)
    a('s_mov_b64 exec, 1')
    a('buffer_store_dword v7, v5, s[8:11], s34 offen sc1')
    a('s_mov_b64 exec, -1')
    a.label('AT_fin')
    if stamps:
        a('s_mov_b32 s10, s6'); a('s_mov_b32 s11, s7')
        emit_stamps(a, 20, 10, 65 * MB, 24)
    a.label('AT_end')
    a('s_endpgm')
    for p2 in range(2):
        for j in range(1, 9):
            a.label('AT_inv%d_%d' % (p2, j))
            a('s_nop 3')
            regs = ([Z, ML1] if not p2 else [CM(0), CM(1), CL(0), CL(1)])
            for b in regs:
                for r in range(4): a('v_mov_b32 v%d, v6' % (b + r))
            a('s_branch AT_inv%d_%d_ret' % (p2, j))

def gen_probe(a):
    name = 'probe_kernel'
    kernel_begin(a, name)
    a('s_cmp_ge_u32 s2, 256')
    a('s_cbranch_scc1 PR_end')
    a('s_load_dwordx2 s[4:5], s[0:1], %d' % KA_W2)
    a('s_load_dwordx2 s[6:7], s[0:1], %d' % KA_WO)
    a('s_load_dwordx2 s[10:11], s[0:1], %d' % KA_WS)
    a('s_load_dwordx2 s[12:13], s[0:1], %d' % KA_X)
    a('s_load_dwordx2 s[14:15], s[0:1], %d' % KA_BX)
    a('v_lshlrev_b32 v1, 4, v0')
    a('s_waitcnt lgkmcnt(0)')
    srd(a, 20, 4, 5, 7 * MB); srd(a, 24, 6, 7, 2 * MB); srd(a, 28, 10, 11, 200 * MB); srd(a, 32, 12, 13, 4 * MB); srd(a, 36, 14, 15, 4 * MB)
    a('s_and_b32 s40, s2, 7'); a('s_lshr_b32 s41, s2, 3')
    regs = []
    def probe(idx, srdb, offexpr):
        for l in offexpr: a(l)
        for rep in range(2):
            a('s_memtime s[50:51]'); a('s_waitcnt lgkmcnt(0)')
            a('buffer_load_dwordx4 v[4:7], v1, s[%d:%d], s44 offen offset:%d' % (srdb, srdb + 3, rep * 2048))
            a('s_waitcnt vmcnt(0)')
            a('s_memtime s[52:53]'); a('s_waitcnt lgkmcnt(0)')
            a('s_sub_u32 s52, s52, s50')
            a('v_mov_b32 v%d, s52' % (10 + 2 * idx + rep))
    probe(0, 28, ['s_mul_i32 s44, s2, 57344', 's_and_b32 s45, s2, 3', 's_lshr_b32 s44, s2, 3', 's_mul_i32 s44, s44, %d' % HO_MG, 's_lshl_b32 s45, s40, 15', 's_add_u32 s44, s44, s45', 's_add_u32 s44, s44, %d' % WS_HO])
    probe(1, 28, ['s_lshl_b32 s44, s40, 19', 's_lshl_b32 s45, s41, 13', 's_add_u32 s44, s44, s45', 's_add_u32 s44, s44, %d' % (WS_QK + 4 * MB)])
    probe(2, 28, ['s_xor_b32 s44, s40, 3', 's_lshl_b32 s44, s44, 19', 's_lshl_b32 s45, s41, 13', 's_add_u32 s44, s44, s45', 's_add_u32 s44, s44, %d' % (WS_VT + 4096)])
    probe(3, 20, ['s_mul_i32 s44, s2, 28672'])
    probe(4, 24, ['s_lshl_b32 s44, s2, 13'])
    probe(5, 32, ['s_lshl_b32 s44, s2, 14'])
    probe(6, 36, ['s_lshl_b32 s44, s2, 14'])
    probe(7, 28, ['s_lshl_b32 s44, s2, 15', 's_add_u32 s44, s44, %d' % WS_P])
    a('s_lshl_b32 s44, s2, 6')
    a('s_add_u32 s44, s44, %d' % (66 * MB))
    a('v_mov_b32 v2, 0')
    for q in range(4):
        a('buffer_store_dwordx4 v[%d:%d], v2, s[28:31], s44 offen offset:%d' % (10 + 4 * q, 13 + 4 * q, 16 * q))
    a.label('PR_end')
    a('s_endpgm')
    return name, kd(name, 64, 64), (256, 64, 0)

HEADER = open('recurrent_scan__sliding_block__dense_activation_squared_relu__prompt.s.ref').read().split('; Override')[0]

def build(kernels, stamps=False):
    a = Asm()
    infos = []
    for g in kernels:
        infos.append(g(a))
    out = HEADER
    for name, k, (gx, bx, lds) in infos:
        out += '; @launch kernel=%s grid=(%d,1,1) block=(%d,1,1) lds=%d\n' % (name, gx, bx, lds)
    out += '.amdgcn_target "amdgcn-amd-amdhsa--gfx950"\n.text\n'
    out += a.text()
    out += '.section .rodata,"a"\n'
    for name, k, _ in infos:
        out += k
    return out

if __name__ == '__main__':
    stamps = '--stamps' in sys.argv
    outp = [x for x in sys.argv[1:] if not x.startswith('--')][0]
    ks = [gen_ln, lambda a: gen_gemm1(a, stamps), gen_att, lambda a: gen_gemm2(a, stamps)]
    if 'v1' not in OPT:
        ks = [gen_ln, lambda a: gen_gemm1(a, stamps), lambda a: gen_k3(a, stamps)]
    if 'probe' in OPT:
        ks = [gen_ln, lambda a: gen_gemm1(a, stamps), gen_probe]
    open(outp, 'w').write(build(ks))
```

```python
import sys
sys.path.insert(0, 'dev')
from asmlib import *

OPT = set(x[2:] for x in sys.argv if x.startswith('--'))
def FL(key):
    for o in OPT:
        if o.startswith(key + '='): return ' ' + o.split('=')[1].replace('+', ' ')
    return ''
def OV(key, default):
    for o in OPT:
        if o.startswith(key + '='): return int(o.split('=')[1])
    return default
MB = 1 << 20
WS_XN = 0
WS_QK = 4 * MB
WS_VT = 12 * MB
WS_HO = 16 * MB
HO_MG = 144 * 4096
WS_SIZE = 268435456
QSCALE = 0x3e8293ee
import struct, math
def f2u(f): return struct.unpack('<I', struct.pack('<f', f))[0]
QSCALE = f2u(math.log2(math.e) / math.sqrt(32.0))

KA_X, KA_WQKV, KA_WO, KA_BX, KA_W1, KA_B1, KA_W2, KA_B2, KA_OUT, KA_DBG, KA_WS = [8 * i for i in range(11)]

def xlane_sum_g(a, v, t):
    a('v_mov_b32 v%d, v%d' % (t, v))
    a('s_nop 1')
    a('v_permlane16_swap_b32 v%d, v%d' % (v, t))
    a('s_nop 1')
    a('v_add_f32 v%d, v%d, v%d' % (v, v, t))
    a('v_mov_b32 v%d, v%d' % (t, v))
    a('s_nop 1')
    a('v_permlane32_swap_b32 v%d, v%d' % (v, t))
    a('s_nop 1')
    a('v_add_f32 v%d, v%d, v%d' % (v, v, t))

def bf16r(a, v):
    a('v_cvt_pk_bf16_f32 v%d, v%d, v%d' % (v, v, v))
    a('v_lshlrev_b32 v%d, 16, v%d' % (v, v))

def gen_ln(a):
    name = 'ln_kernel'
    kernel_begin(a, name)
    PFR = OV('pfr', 256)
    a('s_cmp_ge_u32 s2, 128')
    a('s_cbranch_scc1 LN_pf')
    a('s_load_dwordx2 s[4:5], s[0:1], %d' % KA_X)
    a('s_load_dwordx2 s[6:7], s[0:1], %d' % KA_WS)
    a('v_and_b32 v1, 15, v0')
    a('v_bfe_u32 v2, v0, 4, 2')
    a('v_lshrrev_b32 v3, 6, v0')
    a('v_lshlrev_b32 v4, 11, v1')
    a('v_lshl_add_u32 v4, v2, 4, v4')
    a('v_lshl_add_u32 v4, v3, 8, v4')
    a('s_lshl_b32 s3, s2, 15')
    a('s_waitcnt lgkmcnt(0)')
    srd(a, 8, 4, 5, 2048 * 1024 * 2)
    srd(a, 12, 6, 7, 45 * MB)
    for e in range(4):
        a('buffer_load_dwordx4 v[%d:%d], v4, s[8:11], s3 offen offset:%d' % (8 + 4 * e, 11 + 4 * e, e * 64))
    a('v_and_b32 v5, 63, v0')
    a('v_lshlrev_b32 v5, 4, v5')
    a('v_lshl_add_u32 v5, v3, 14, v5')
    a('s_lshr_b32 s16, s2, 2')
    a('s_lshl_b32 s16, s16, 17')
    a('s_and_b32 s17, s2, 3')
    a('s_lshl_b32 s17, s17, 10')
    a('s_add_u32 s16, s16, s17')
    a('v_mov_b32 v6, 0')
    a('v_and_b32 v7, 31, v0')
    a('v_lshlrev_b32 v7, 2, v7')
    a('s_lshl_b32 s18, s2, 9')
    a('s_add_u32 s18, s18, %d' % (44 * MB + 65536))
    a('s_and_b32 s19, s2, 7')
    a('s_lshl_b32 s19, s19, 12')
    a('s_add_u32 s19, s19, %d' % (44 * MB))
    a('v_cmp_gt_u32 vcc, 32, v0')
    a('s_and_saveexec_b64 s[20:21], vcc')
    a('s_cbranch_execz LN_noz')
    a('buffer_store_dword v6, v7, s[12:15], s18 offen')
    a('buffer_store_dword v6, v7, s[12:15], s18 offen offset:256')
    a('buffer_store_dword v6, v7, s[12:15], s19 offen')
    a.label('LN_noz')
    a('s_mov_b64 exec, s[20:21]')
    a('s_waitcnt vmcnt(0)')
    for d in range(16):
        a('v_lshlrev_b32 v%d, 16, v%d' % (32 + 2 * d, 8 + d))
        a('v_and_b32 v%d, 0xffff0000, v%d' % (33 + 2 * d, 8 + d))
    a('v_pk_add_f32 v[24:25], v[32:33], v[34:35]')
    a('v_pk_add_f32 v[26:27], v[36:37], v[38:39]')
    for d in range(2, 8):
        a('v_pk_add_f32 v[24:25], v[24:25], v[%d:%d]' % (32 + 4 * d, 33 + 4 * d))
        a('v_pk_add_f32 v[26:27], v[26:27], v[%d:%d]' % (34 + 4 * d, 35 + 4 * d))
    a('v_pk_add_f32 v[24:25], v[24:25], v[26:27]')
    a('v_add_f32 v24, v24, v25')
    xlane_sum_g(a, 24, 25)
    a('v_mul_f32 v24, 0x%x, v24' % f2u(1.0 / 128))
    a('v_mov_b32 v25, v24')
    a('v_mov_b32 v26, 0')
    a('v_mov_b32 v27, 0')
    for d in range(16):
        a('v_pk_add_f32 v[28:29], v[%d:%d], v[24:25] neg_lo:[0,1] neg_hi:[0,1]' % (32 + 2 * d, 33 + 2 * d))
        a('v_pk_fma_f32 v[26:27], v[28:29], v[28:29], v[26:27]')
    a('v_add_f32 v25, v26, v27')
    xlane_sum_g(a, 25, 26)
    a('v_lshlrev_b32 v6, 3, v1')
    a('v_lshl_add_u32 v7, v3, 7, v6')
    a('ds_write_b64 v7, v[24:25]')
    a('s_waitcnt lgkmcnt(0)')
    a('s_barrier')
    for w in range(8):
        a('ds_read_b64 v[%d:%d], v6 offset:%d' % (8 + 2 * w, 9 + 2 * w, w * 128))
    a('s_waitcnt lgkmcnt(0)')
    a('v_add_f32 v24, v8, v10')
    a('v_add_f32 v25, v9, v11')
    for w in range(2, 8):
        a('v_add_f32 v24, v24, v%d' % (8 + 2 * w))
        a('v_add_f32 v25, v25, v%d' % (9 + 2 * w))
    a('v_mul_f32 v24, 0.125, v24' if False else 'v_mul_f32 v24, 0x3e000000, v24')
    a('v_mov_b32 v26, 0')
    for w in range(8):
        a('v_sub_f32 v27, v%d, v24' % (8 + 2 * w))
        a('v_fmac_f32 v26, v27, v27')
    a('v_mov_b32 v27, 0x43000000')
    a('v_fmac_f32 v25, v26, v27')
    a('v_mul_f32 v25, 0x%x, v25' % f2u(1.0 / 1024))
    bf16r(a, 24)
    bf16r(a, 25)
    a('v_add_f32 v25, 0x%x, v25' % f2u(1e-5))
    bf16r(a, 25)
    a('v_sqrt_f32 v25, v25')
    a('s_nop 0')
    bf16r(a, 25)
    a('v_rcp_f32 v26, v25')
    a('v_mov_b32 v25, v24')
    a('v_mov_b32 v27, v26')
    for d in range(16):
        x0 = 32 + 2 * d
        a('v_pk_add_f32 v[%d:%d], v[%d:%d], v[24:25] neg_lo:[0,1] neg_hi:[0,1]' % (x0, x0 + 1, x0, x0 + 1))
        a('v_cvt_pk_bf16_f32 v28, v%d, v%d' % (x0, x0 + 1))
        a('v_lshlrev_b32 v%d, 16, v28' % x0)
        a('v_and_b32 v%d, 0xffff0000, v28' % (x0 + 1))
        a('v_pk_mul_f32 v[%d:%d], v[%d:%d], v[26:27]' % (x0, x0 + 1, x0, x0 + 1))
        a('v_cvt_pk_bf16_f32 v%d, v%d, v%d' % (8 + d, x0, x0 + 1))
    for e in range(4):
        a('s_add_u32 s17, s16, %d' % (e * 4096))
        a('buffer_store_dwordx4 v[%d:%d], v5, s[12:15], s17 offen' % (8 + 4 * e, 11 + 4 * e))
    a.label('LN_end')
    a('s_endpgm')
    a.label('LN_pf')
    if PFR:
        a('s_cmp_ge_u32 s2, 256')
        a('s_cbranch_scc1 LN_end')
        a('s_load_dwordx2 s[4:5], s[0:1], %d' % KA_WQKV)
        a('s_load_dwordx2 s[6:7], s[0:1], %d' % KA_W1)
        a('s_load_dwordx2 s[16:17], s[0:1], %d' % KA_B1)
        a('v_lshrrev_b32 v1, 6, v0')
        a('v_and_b32 v2, 63, v0')
        a('v_readfirstlane_b32 s20, v1')
        a('s_and_b32 s21, s2, 7')
        a('s_lshr_b32 s22, s2, 3')
        a('s_and_b32 s22, s22, 15')
        a('s_lshl_b32 s22, s22, 2')
        a('s_lshr_b32 s23, s20, 1')
        a('s_add_u32 s22, s22, s23')
        if PFR < 512:
            a('s_cmp_ge_u32 s22, %d' % (PFR // 8))
            a('s_cbranch_scc1 LN_end')
        a('v_lshrrev_b32 v3, 3, v2')
        a('v_and_b32 v4, 7, v2')
        a('s_lshl_b32 s24, s22, 3')
        a('v_add_u32 v3, s24, v3')
        a('s_and_b32 s25, s20, 1')
        a('s_cmp_eq_u32 s25, 1')
        a('s_cbranch_scc1 LN_pf_w1')
        a('s_mov_b32 s26, 6144')
        a('v_mul_lo_u32 v3, v3, s26')
        a('v_min_u32 v4, 5, v4')
        a('s_lshl_b32 s27, s21, 8')
        a('v_lshrrev_b32 v5, 1, v4')
        a('v_lshl_add_u32 v3, v5, 11, v3')
        a('v_and_b32 v6, 1, v4')
        a('v_lshl_add_u32 v3, v6, 7, v3')
        a('v_add_u32 v3, s27, v3')
        a('s_waitcnt lgkmcnt(0)')
        srd(a, 8, 4, 5, 1024 * 6144)
        for e in range(max(1, PFR // 512)):
            a('s_mov_b32 s28, %d' % (e * 512 * 6144))
            a('buffer_load_dword v%d, v3, s[8:11], s28 offen%s' % (8 + e, FL('pff')))
        a('s_endpgm')
        a.label('LN_pf_w1')
        a('s_mov_b32 s26, 7168')
        a('v_mul_lo_u32 v3, v3, s26')
        a('v_min_u32 v4, 6, v4')
        a('s_mul_i32 s27, s21, 896')
        a('v_lshl_add_u32 v3, v4, 7, v3')
        a('v_add_u32 v3, s27, v3')
        a('s_waitcnt lgkmcnt(0)')
        srd(a, 8, 6, 7, 1024 * 7168)
        srd(a, 12, 16, 17, 7168)
        a('v_lshlrev_b32 v5, 7, v4')
        a('buffer_load_dword v7, v5, s[12:15], s27 offen')
        for e in range(max(1, PFR // 512)):
            a('s_mov_b32 s28, %d' % (e * 512 * 7168))
            a('buffer_load_dword v%d, v3, s[8:11], s28 offen%s' % (8 + e, FL('pff')))
    a('s_endpgm')
    return name, kd(name, 64, 64), (256 if PFR else 128, 512, 1024)

def gen_gemm1(a, stamps=False):
    name = 'gemm1_kernel'
    NS = OV('ns1', 4); DA = OV('da1', 4)
    kernel_begin(a, name)
    a('s_cmp_ge_u32 s2, 256')
    a('s_cbranch_scc1 G1_end')
    a('s_load_dwordx2 s[4:5], s[0:1], %d' % KA_WQKV)
    a('s_load_dwordx2 s[6:7], s[0:1], %d' % KA_W1)
    a('s_load_dwordx2 s[8:9], s[0:1], %d' % KA_B1)
    a('s_load_dwordx2 s[10:11], s[0:1], %d' % KA_WS)
    if stamps:
        a('s_memrealtime s[90:91]')
        a('s_memtime s[92:93]')
    a('v_mov_b32 v255, v0')
    a('v_lshrrev_b32 v254, 6, v0')
    a('s_nop 0')
    a('v_readfirstlane_b32 s40, v254')
    a('v_and_b32 v253, 63, v255')
    a('s_and_b32 s41, s2, 7')
    a('s_lshr_b32 s42, s2, 3')
    a('s_and_b32 s43, s42, 7')
    a('s_lshr_b32 s44, s42, 3')
    a('s_and_b32 s45, s44, 1')
    a('s_lshl_b32 s41, s41, 1')
    a('s_add_u32 s45, s45, s41')
    a('s_lshl_b32 s46, s43, 2')
    a('s_add_u32 s46, s46, s40')
    a('s_cmp_ge_u32 s44, 2')
    a('s_cbranch_scc1 G1_w1')
    gemm1_variant(a, 'qkv', NS, DA, stamps)
    a.label('G1_w1')
    gemm1_variant(a, 'w1', NS, DA, stamps)
    a.label('G1_end')
    a('s_endpgm')
    return name, kd(name, 512, 256), (256, 256, NS * 28672)

def gemm1_variant(a, var, NS, DA, stamps):
    MFM = 'v_mfma_f32_16x16x32_bf16'
    isw1 = var == 'w1'
    NT = 14 if isw1 else 12
    LD = 7168 if isw1 else 6144
    SLAB = 7168 if isw1 else 6144
    STAGE = 4 * SLAB
    ND = 7 if isw1 else 6
    L = 'G1%s_' % var
    SF = FL('s1w' if isw1 else 's1q')
    V_RD = 224
    V_DE, V_DO, V_DS = 230, 231, 232
    V_A = 233
    T0, T1, T2, T3 = 234, 235, 236, 237
    V_LANE = 253
    def bfrag(t): return 4 * t
    def afrag(slot, i): return 64 + 16 * slot + 4 * i
    XB = 64 + 16 * DA
    def swapped(t): return isw1 or t < 8
    def acc(i, t):
        if swapped(t):
            return (i * NT + t) * 4 if isw1 else (i * 8 + t) * 4
        return 128 + ((t - 8) * 4 + i) * 4
    S_WSRD, S_ASRD, S_OSRD, S_BSRD = 12, 16, 20, 24
    S_W, S_J, S_MG = 40, 45, 46
    S_BOFF, S_BOFF2, S_AOFF, S_T, S_RDELTA, S_RPOS, S_CNT = 50, 51, 52, 53, 54, 55, 56
    S_SCALE = 58
    S_ST = 28
    a.c('--- variant %s' % var)
    a('v_lshrrev_b32 v%d, 3, v%d' % (T0, V_LANE))
    a('s_lshr_b32 s60, s%d, 1' % S_W)
    a('v_and_b32 v%d, 6, v%d' % (T1, T0))
    a('s_lshl_b32 s60, s60, 5')
    a('v_and_b32 v%d, 7, v%d' % (T2, V_LANE))
    a('s_and_b32 s61, s%d, 1' % S_W)
    a('v_xor_b32 v%d, v%d, v%d' % (T1, T1, T2))
    a('s_lshl_b32 s61, s61, 2')
    a('v_lshrrev_b32 v%d, 2, v%d' % (T2, T0))
    a('s_add_u32 s60, s60, s61')
    a('v_and_b32 v%d, 3, v%d' % (T0, T0))
    a('s_mov_b32 s61, %d' % LD)
    a('v_lshl_add_u32 v%d, v%d, 3, v%d' % (T0, T2, T0))
    a('v_add_u32 v%d, s60, v%d' % (T0, T0))
    a('v_mul_lo_u32 v%d, v%d, s61' % (T0, T0))
    a('v_lshl_add_u32 v%d, v%d, 4, v%d' % (V_DE, T1, T0))
    if isw1:
        a('s_and_b32 s62, s%d, 1' % S_J)
        a('s_lshl_b32 s63, s62, 6')
        a('s_xor_b32 s62, s62, 1')
        a('s_mul_i32 s62, s62, 384')
        a('v_add_u32 v%d, s63, v%d' % (V_DE, V_DE))
        a('v_lshrrev_b32 v%d, 4, v%d' % (T0, V_LANE))
        a('v_and_b32 v%d, 1, v%d' % (T1, T0))
        a('v_lshlrev_b32 v%d, 1, v%d' % (T1, T1))
        a('v_and_b32 v%d, 3, v%d' % (T2, V_LANE))
        a('v_xor_b32 v%d, v%d, v%d' % (T1, T1, T2))
        a('v_bfe_u32 v%d, v%d, 2, 2' % (T2, V_LANE))
        a('v_lshl_add_u32 v%d, v%d, 3, v%d' % (T0, T0, T2))
        a('v_add_u32 v%d, s60, v%d' % (T0, T0))
        a('v_mul_lo_u32 v%d, v%d, s61' % (T0, T0))
        a('v_lshl_add_u32 v%d, v%d, 4, v%d' % (V_DS, T1, T0))
        a('v_add_u32 v%d, s62, v%d' % (V_DS, V_DS))
    a('v_add_u32 v%d, %d, v%d' % (V_DO, 16 * LD, V_DE))
    a('v_lshlrev_b32 v%d, 4, v%d' % (V_A, V_LANE))
    if isw1:
        a('s_mul_i32 s%d, s%d, 448' % (S_BOFF, S_J))
        a('s_add_u32 s64, s%d, s63' % S_BOFF)
        a('s_add_u32 s65, s%d, s62' % S_BOFF)
    else:
        a('s_lshl_b32 s%d, s%d, 7' % (S_BOFF, S_J))
        a('s_add_u32 s%d, s%d, 4096' % (S_BOFF2, S_BOFF))
    a('s_mov_b32 s%d, 0' % S_AOFF)
    a('s_mul_i32 s%d, s%d, %d' % (S_T, S_W, SLAB))
    if isw1:
        a('s_sub_u32 s65, s65, 384')
        a('v_mov_b32 v%d, s64' % T1)
        a('v_mov_b32 v%d, s65' % T2)
        a('v_cmp_gt_u32 vcc, 48, v%d' % V_LANE)
        a('s_nop 1')
        a('v_cndmask_b32 v%d, v%d, v%d, vcc' % (T1, T2, T1))
        a('v_lshl_add_u32 v%d, v%d, 3, v%d' % (T3, V_LANE, T1))
    a('s_waitcnt lgkmcnt(0)')
    if isw1:
        srd(a, S_BSRD, 8, 9, 3584 * 2)
        a('buffer_load_dwordx2 v[238:239], v%d, s[%d:%d], 0 offen' % (T3, S_BSRD, S_BSRD + 3))
        srd(a, S_WSRD, 6, 7, 1024 * LD)
    else:
        srd(a, S_WSRD, 4, 5, 1024 * LD)

    if isw1:
        pieces = [(V_DE, S_BOFF, 0, 0), (V_DO, S_BOFF, 0, 1024), (V_DE, S_BOFF, 128, 2048), (V_DO, S_BOFF, 128, 3072),
                  (V_DE, S_BOFF, 256, 4096), (V_DO, S_BOFF, 256, 5120), (V_DS, S_BOFF, 0, 6144)]
    else:
        pieces = [(V_DE, S_BOFF, 0, 0), (V_DO, S_BOFF, 0, 1024), (V_DE, S_BOFF, 2048, 2048), (V_DO, S_BOFF, 2048, 3072),
                  (V_DE, S_BOFF2, 0, 4096), (V_DO, S_BOFF2, 0, 5120)]
    n_first = (ND + 1) // 2
    def m0_set(p):
        v, s, imm, lo = pieces[p]
        return 's_add_u32 m0, s%d, %d' % (S_T, lo - imm)
    def dma(p):
        v, s, imm, lo = pieces[p]
        return 'buffer_load_dwordx4 v%d, s[%d:%d], s%d offen offset:%d%s lds' % (v, S_WSRD, S_WSRD + 3, s, imm, FL('w1f'))
    def aload(slot, i):
        b = afrag(slot, i)
        return 'buffer_load_dwordx4 a[%d:%d], v%d, s[%d:%d], s%d offen offset:%d%s' % (b, b + 3, V_A, S_ASRD, S_ASRD + 3, S_AOFF, i * 1024, FL('a1f'))
    def adv_a():
        return ['s_add_u32 s%d, s%d, 4096' % (S_AOFF, S_AOFF)]
    def adv_dma():
        r = ['s_add_u32 s%d, s%d, %d' % (S_BOFF, S_BOFF, 64 * LD)]
        if not isw1:
            r.append('s_add_u32 s%d, s%d, %d' % (S_BOFF2, S_BOFF2, 64 * LD))
        r += ['s_add_u32 s%d, s%d, %d' % (S_T, S_T, STAGE),
              's_cmp_ge_u32 s%d, %d' % (S_T, NS * STAGE),
              's_cselect_b32 s60, %d, 0' % (NS * STAGE),
              's_sub_u32 s%d, s%d, s60' % (S_T, S_T)]
        return r
    def rd(t, s, q, dst=None):
        b = (bfrag(t) if dst is None else dst) + 2 * s
        if t < 12:
            v = V_RD + (t & 3); off = (t >> 2) * 2048
        else:
            v = V_RD + 4 + (t - 12); off = 0
        off += (2 * q + s) * SLAB
        return 'ds_read_b64_tr_b16 a[%d:%d], v%d offset:%d' % (b, b + 1, v, off)
    def mfma(i, t, W, X, first=False):
        c = acc(i, t)
        if not swapped(t): W, X = X, W
        cs = 'v[%d:%d]' % (c, c + 3)
        if first:
            cs = ('v[%d:%d]' % (acc(3, t), acc(3, t) + 3)) if isw1 else '0'
        return '%s v[%d:%d], a[%d:%d], a[%d:%d], %s' % (MFM, c, c + 3, W, W + 3, X, X + 3, cs)
    LA = DA - 1; DS = NS - 2
    def step_ops(v):
        ops = []
        if v + LA >= 0: ops += [('A', v + LA)] * 4
        st = (v + 1) // 2 + DS
        if st >= 0: ops += [('D', st)] * (n_first if v % 2 else ND - n_first)
        return ops
    V0 = -max(LA, 2 * DS + 1)
    def need_cnt(k):
        seq = []
        for v in range(V0, k): seq += step_ops(v)
        need = set()
        if k >= 0: need.add(('A', k))
        if k % 2: need.add(('D', (k + 1) // 2))
        last = max(i for i, o in enumerate(seq) if o in need)
        return len(seq) - 1 - last
    def vstep_list(vs):
        r = []
        if vs + LA >= 0:
            for i in range(4):
                r.append([aload((vs + LA) % DA, i)] + (adv_a() if i == 3 else []))
        odd = vs % 2 != 0
        if (vs + 1) // 2 + DS >= 0:
            ps = list(range(0, n_first) if odd else range(n_first, ND))
            for p in ps:
                r.append([m0_set(p), 's_nop 0', dma(p)] + (adv_dma() if (not odd and p == ps[-1]) else []))
        return r
    if stamps: a('s_memtime s[70:71]')
    pro = []
    for vs in range(V0, -1): pro += vstep_list(vs)
    seq = []
    for v in range(V0, -1): seq += step_ops(v)
    nb1 = max(i for i, o in enumerate(seq) if o in (('A', 0), ('D', 0))) + 1
    did_asrd = False
    def asrd():
        a('s_lshl_b32 s61, s%d, 17' % S_MG)
        a('s_add_u32 s62, s10, s61')
        a('s_addc_u32 s63, s11, 0')
        srd(a, S_ASRD, 62, 63, 131072)
    for n in range(nb1):
        if seq[n][0] == 'A' and not did_asrd:
            asrd(); did_asrd = True
        for x in pro[n]: a(x)
    srd(a, S_OSRD, 10, 11, 34 * MB)
    a('v_lshrrev_b32 v%d, 4, v%d' % (T0, V_LANE))
    a('v_bfe_u32 v%d, v%d, 2, 2' % (T1, V_LANE))
    a('v_and_b32 v%d, 1, v%d' % (T2, T0))
    a('v_lshl_add_u32 v%d, v%d, 2, v%d' % (T2, T2, T1))
    a('v_and_b32 v%d, 6, v%d' % (T3, T2))
    a('v_bfe_u32 v%d, v%d, 1, 1' % (T1, V_LANE))
    a('v_or_b32 v%d, v%d, v%d' % (T3, T3, T1))
    a('v_lshrrev_b32 v%d, 1, v%d' % (T0, T0))
    a('v_lshlrev_b32 v%d, 10, v%d' % (T0, T0))
    a('v_lshl_add_u32 v%d, v%d, 7, v%d' % (T0, T2, T0))
    a('v_and_b32 v%d, 1, v%d' % (T1, V_LANE))
    a('v_lshl_add_u32 v%d, v%d, 3, v%d' % (T0, T1, T0))
    for b in range(4):
        a('v_xor_b32 v%d, %d, v%d' % (T1, 2 * b, T3))
        a('v_lshl_add_u32 v%d, v%d, 4, v%d' % (V_RD + b, T1, T0))
    if isw1:
        a('v_lshrrev_b32 v%d, 2, v%d' % (T0, V_LANE))
        a('v_lshlrev_b32 v%d, 6, v%d' % (T0, T0))
        a('v_and_b32 v%d, 1, v%d' % (T1, V_LANE))
        a('v_lshl_add_u32 v%d, v%d, 3, v%d' % (T0, T1, T0))
        a('v_add_u32 v%d, 6144, v%d' % (T0, T0))
        a('v_bfe_u32 v%d, v%d, 4, 1' % (T1, V_LANE))
        a('v_lshlrev_b32 v%d, 1, v%d' % (T1, T1))
        a('v_bfe_u32 v%d, v%d, 1, 1' % (T2, V_LANE))
        a('v_or_b32 v%d, v%d, v%d' % (T1, T1, T2))
        for b in range(2):
            a('v_xor_b32 v%d, %d, v%d' % (T2, 2 * b, T1))
            a('v_lshl_add_u32 v%d, v%d, 4, v%d' % (V_RD + 4 + b, T2, T0))
    if isw1:
        a('s_mul_i32 s60, s%d, %d' % (S_MG, HO_MG))
        a('s_add_u32 s60, s60, %d' % WS_HO)
        a('s_mul_i32 s61, s%d, %d' % (S_J, 7 * 4096))
        a('s_add_u32 s60, s60, s61')
        a('s_and_b32 s62, s%d, 1' % S_J)
        a('s_lshl_b32 s63, s62, 12')
        a('s_add_u32 s%d, s60, s63' % S_ST)
        for p in range(1, 6):
            a('s_add_u32 s%d, s%d, %d' % (S_ST + p, S_ST, p * 4096))
        a('s_xor_b32 s62, s62, 1')
        a('s_mul_i32 s62, s62, %d' % (6 * 4096))
        a('s_add_u32 s%d, s60, s62' % (S_ST + 6))
    else:
        a('s_lshl_b32 s60, s%d, 18' % S_J)
        a('s_lshl_b32 s61, s%d, 12' % S_MG)
        a('s_add_u32 s60, s60, s61')
        for p in range(6):
            a('s_add_u32 s%d, s60, %d' % (S_ST + p, WS_QK + (p >> 1) * 4 * MB + (p & 1) * 131072))
        a('s_mov_b32 s%d, 0x%x' % (S_SCALE, QSCALE))
    if stamps: a('s_memtime s[72:73]')
    if isw1:
        a('v_lshrrev_b32 v%d, 4, v%d' % (T0, V_LANE))
        a('v_lshlrev_b32 v%d, 2, v%d' % (T0, T0))
        a('s_waitcnt vmcnt(%d)' % nb1)
        for t in range(NT):
            d = acc(3, t)
            a('ds_bpermute_b32 v%d, v%d, v238 offset:%d' % (d + 2, T0, t * 16))
            a('ds_bpermute_b32 v%d, v%d, v239 offset:%d' % (d + 3, T0, t * 16))
            if t == 6: a('s_waitcnt lgkmcnt(0)')
        a('s_waitcnt lgkmcnt(0)')
        for t in range(NT):
            d = acc(3, t)
            a('v_lshlrev_b32 v%d, 16, v%d' % (d, d + 2))
            a('v_and_b32 v%d, 0xffff0000, v%d' % (d + 1, d + 2))
            a('v_lshlrev_b32 v%d, 16, v%d' % (d + 2, d + 3))
            a('v_and_b32 v%d, 0xffff0000, v%d' % (d + 3, d + 3))
    if stamps: a('s_memtime s[74:75]')
    rest = pro[nb1:]
    nrest = len(rest)
    npre = OV('npre', 8)
    for n in range(npre):
        for x in rest.pop(0): a(x)
    a('s_waitcnt vmcnt(%d)' % (4 + npre))
    if stamps: a('s_memtime s[76:77]')
    a('s_barrier')
    if stamps:
        a('s_memtime s[94:95]')
    for t in range(NT - 1):
        a(rd(t, 0, 0)); a(rd(t, 1, 0))
        if t >= 1 and rest:
            for x in rest.pop(0): a(x)
    assert not rest
    TAIL = 'notail' not in OPT
    a('s_mov_b32 s%d, 0' % S_RPOS)
    a('s_mov_b32 s%d, 7' % S_CNT)
    a('s_mov_b32 s66, 0x%x' % ((-(NS - 1) * STAGE) & 0xffffffff))
    a('s_mov_b32 s67, %d' % STAGE)
    a('s_waitcnt lgkmcnt(0)')
    def vadd(b):
        return 'v_add_u32 v%d, s%d, v%d' % (V_RD + b, S_RDELTA, V_RD + b)
    def emit_step(k, do_a=True, do_dma=True, first=False):
        odd = k % 2 == 1
        q = k % 2
        fill = {}
        def put(g, u, ins):
            fill.setdefault(4 * g + u, []).extend(ins if isinstance(ins, list) else [ins])
        nk = min(need_cnt(k), need_cnt(k + DA), need_cnt(k + 2 * DA))
        pre = ['s_waitcnt vmcnt(%d)' % nk]
        if not odd:
            pk = min(need_cnt(k - 1), need_cnt(k - 1 + DA), need_cnt(k - 1 + 2 * DA))
            if pk + len(step_ops(k - 1 + DA)) <= nk: pre = []
        if odd and 'nobar' not in OPT:
            pre.append('s_barrier')
        if first:
            pre = ['s_waitcnt vmcnt(%d)' % nrest]
            do_a = do_dma = False
            ops = vstep_list(-1) + vstep_list(0)
            pos = 2
            for o in ops:
                o = [x for x in o if x != 's_nop 0']
                if o[0].startswith('s_add_u32 m0'):
                    fill.setdefault(pos - 1, []).append(o[0]); o = o[1:]
                fill.setdefault(pos, []).extend(o)
                pos += 3
            assert pos - 3 < 4 * NT
        if 'nords' not in OPT:
            put(0, 0, rd(NT - 1, 0, q)); put(0, 1, rd(NT - 1, 1, q))
            for t in range(1, NT):
                put(t, 0, rd(t - 1, 0, 1 - q)); put(t, 1, rd(t - 1, 1, 1 - q))
        put(3, 3, 's_waitcnt lgkmcnt(8)')
        put(3 + NT // 2, 2 if NT == 14 else 3, 's_waitcnt lgkmcnt(8)')
        if do_a:
            for i in range(4):
                if 'noa' not in OPT: put(i, 2, aload((k + LA) % DA, i))
            put(4, 2, adv_a())
        ps = list(range(0, n_first)) if odd else list(range(n_first, ND))
        if do_dma:
            for n, p in enumerate(ps):
                g = 5 + 2 * n
                put(g - 1, 3, m0_set(p))
                if 'nodma' not in OPT: put(g, 2, dma(p))
        if not odd:
            assert len(ps) == 3
            adv = adv_dma()
            if do_dma:
                if isw1:
                    put(9, 3, adv[0]); put(11, 2, adv[1]); put(12, 2, adv[2:4]); put(13, 2, adv[4])
                else:
                    put(10, 2, adv[0:2]); put(10, 3, adv[2]); put(11, 2, adv[3:6])
            put(0, 3, 's_add_u32 s%d, s%d, 1' % (S_RPOS, S_RPOS))
            put(1, 3, ['s_cmp_eq_u32 s%d, %d' % (S_RPOS, NS), 's_cselect_b32 s%d, s66, s67' % S_RDELTA])
            put(1 if first else 2, 3, 's_cselect_b32 s%d, 0, s%d' % (S_RPOS, S_RPOS))
            if isw1:
                for b in range(4):
                    put(10 + b, 3, vadd(b))
            else:
                put(9, 3, vadd(0)); put(10, 3, vadd(1)); put(11, 3, vadd(2))
        else:
            if isw1:
                put(1, 3, vadd(4)); put(2, 3, vadd(5))
            else:
                put(1, 3, vadd(3))
        for x in pre: a(x)
        for t in range(NT):
            for i in range(4):
                a(mfma(i, t, bfrag(t), afrag(k % DA, i), first))
                for x in fill.pop(4 * t + i, []): a(x)
        assert not fill, fill
    assert DA == 4
    emit_step(0, first=True)
    a.raw('.p2align 4')
    a.label(L + 'loop')
    for k in range(1, DA + 1):
        emit_step(k)
    a('s_sub_u32 s%d, s%d, 1' % (S_CNT, S_CNT))
    a('s_cmp_lg_u32 s%d, 0' % S_CNT)
    a('s_cbranch_scc1 %sloop' % L)
    def epi(p):
        r = []
        def st(b, so, off):
            return 'buffer_store_dwordx4 v[%d:%d], v%d, s[%d:%d], s%d offen offset:%d%s' % (b, b + 3, V_A, S_OSRD, S_OSRD + 3, so, off, SF)
        def cvt(b):
            return ['v_cvt_pk_bf16_f32 v%d, v%d, v%d' % (b + r_, b + 2 * r_, b + 2 * r_ + 1) for r_ in range(4)]
        if isw1:
            for i in range(4):
                b = acc(i, 2 * p)
                if 'pk' in OPT:
                    for r_ in range(0, 8, 2):
                        tt = T0 + (r_ & 2)
                        r.append('v_max_f32 v%d, 0, v%d' % (tt, b + r_))
                        r.append('v_max_f32 v%d, 0, v%d' % (tt + 1, b + r_ + 1))
                        r.append('v_pk_mul_f32 v[%d:%d], v[%d:%d], v[%d:%d]' % (b + r_, b + r_ + 1, tt, tt + 1, tt, tt + 1))
                    r += cvt(b)
                else:
                    for r_ in range(8):
                        r.append('v_mul_f32 v%d, v%d, abs(v%d)' % (b + r_, b + r_, b + r_))
                    r += cvt(b)
                    for r_ in range(4):
                        r.append('v_pk_max_i16 v%d, v%d, 0' % (b + r_, b + r_))
                r.append(st(b, S_ST + p, i * 1024))
        elif p < 4:
            for i in range(4):
                b = acc(i, 2 * p)
                for r_ in range(8):
                    if p < 2: r.append('v_mul_f32 v%d, s%d, v%d' % (b + r_, S_SCALE, b + r_))
                r += cvt(b)
                r.append(st(b, S_ST + p, i * 1024))
        else:
            hv = p - 4
            for dt in range(2):
                for ip in range(2):
                    b = acc(2 * ip, 8 + 2 * hv + dt)
                    r += cvt(b)
                    r.append(st(b, S_ST + 4 + hv, (ip * 2 + dt) * 1024))
        return r
    def pf2():
        if not isw1 and 'nopf2' not in OPT:
            a('s_load_dwordx2 s[4:5], s[0:1], %d' % KA_W2)
            a('s_load_dwordx2 s[6:7], s[0:1], %d' % KA_WO)
            a('s_lshl_b32 s60, s%d, 5' % S_J)
            a('s_add_u32 s60, s60, s%d' % S_MG)
            a('s_lshl_b32 s60, s60, 13')
            a('s_add_u32 s61, s60, %d' % (4 * MB))
            a('v_lshlrev_b32 v%d, 7, v%d' % (T0, V_LANE))
            a('s_waitcnt lgkmcnt(0)')
            srd(a, S_WSRD, 4, 5, 3584 * 2048)
            srd(a, S_BSRD, 6, 7, 1024 * 2048)
            a('buffer_load_dword v%d, v%d, s[%d:%d], s60 offen%s' % (T1, T0, S_WSRD, S_WSRD + 3, FL('pf2f')))
            a('buffer_load_dword v%d, v%d, s[%d:%d], s61 offen%s' % (T2, T0, S_WSRD, S_WSRD + 3, FL('pf2f')))
            a('buffer_load_dword v%d, v%d, s[%d:%d], s60 offen%s' % (T3, T0, S_BSRD, S_BSRD + 3, FL('pf2f')))
    NP = NT // 2
    if TAIL:
        if stamps: a('s_memtime s[96:97]')
        assert DA == 4
        def xb(par, tl, kk): return XB + 16 * par + 8 * kk + 4 * tl
        def xreads(p):
            r = []
            for kk in range(2):
                for tl in range(2):
                    for s_ in range(2):
                        r.append(rd(2 * p + tl, s_, kk, dst=xb(p & 1, tl, kk)))
            return r
        a('s_waitcnt vmcnt(7)')
        a('s_barrier')
        a(rd(NT - 1, 0, 1)); a(rd(NT - 1, 1, 1))
        for b in ((4, 5) if isw1 else (3,)): a(vadd(b))
        for x in xreads(0): a(x)
        a('s_waitcnt lgkmcnt(10)')
        for p in range(NP):
            ms = []
            for kk in range(3):
                for tl in range(2):
                    for i in range(4):
                        t = 2 * p + tl
                        W = bfrag(t) if kk == 0 else xb(p & 1, tl, kk - 1)
                        ms.append(mfma(i, t, W, afrag((29 + kk) % DA, i)))
            nxt = xreads(p + 1) if p + 1 < NP else []
            ep = epi(p - 1) if p > 0 else []
            ngap = len(ms) - 4
            for g, m in enumerate(ms):
                if g == 8:
                    a('s_waitcnt lgkmcnt(%d)' % min(len(nxt), 8))
                if g == 16 and p == 0:
                    a('s_waitcnt vmcnt(0)')
                    pf2()
                a(m)
                if g < 4:
                    for x in nxt[2 * g:2 * g + 2]: a(x)
                    if not nxt: a('s_nop 0')
                else:
                    lo = (g - 4) * len(ep) // ngap; hi = (g - 3) * len(ep) // ngap
                    for x in ep[lo:hi]: a(x)
        a('s_nop 7')
        for x in epi(NP - 1): a(x)
    else:
        for k in (1, 2, 3): emit_step(k)
        if stamps: a('s_memtime s[96:97]')
        pf2()
        a('s_nop 7')
        for p in range(NP):
            for x in epi(p): a(x)
    if stamps:
        emit_stamps(a, S_W, 10, 64 * MB, S_ASRD, extra=True)
    a('s_endpgm')

MF = 'v_mfma_f32_16x16x32_bf16'
def gen_att(a):
    name = 'att_kernel'
    kernel_begin(a, name)
    KOFF, VOFF = 4096, 4096 + 32768
    Q = [8, 12]; KF = [16, 20]; VF = [24, 28]
    def S(par, T, q): return 32 + 16 * par + (q * 2 + T) * 4
    def C(T, q): return 64 + (q * 2 + T) * 4
    P = [80, 84]
    def O(q, d): return 88 + 12 * q + 4 * d
    ONES, MC, ML = 112, 116, 124
    M = [120, 121]; VKA, VVA = 122, 123
    VL16 = 1
    NEG = f2u(-1e30)
    a('s_cmp_ge_u32 s2, 256')
    a('s_cbranch_scc1 AT_end')
    a('s_load_dwordx2 s[4:5], s[0:1], %d' % KA_WS)
    a('v_lshrrev_b32 v2, 6, v0')
    a('v_and_b32 v3, 63, v0')
    a('v_readfirstlane_b32 s20, v2')
    a('v_lshlrev_b32 v%d, 4, v3' % VL16)
    a('s_and_b32 s21, s2, 31')
    a('s_lshr_b32 s22, s2, 5')
    a('s_waitcnt lgkmcnt(0)')
    srd(a, 8, 4, 5, 34 * MB)
    a('s_lshl_b32 s23, s21, 17')
    a('s_lshl_b32 s24, s22, 14')
    a('s_add_u32 s23, s23, s24')
    a('s_lshl_b32 s25, s20, 11')
    a('s_add_u32 s25, s25, s23')
    a('s_add_u32 s25, s25, %d' % WS_QK)
    a('buffer_load_dwordx4 v[%d:%d], v%d, s[8:11], s25 offen' % (Q[0], Q[0] + 3, VL16))
    a('buffer_load_dwordx4 v[%d:%d], v%d, s[8:11], s25 offen offset:1024' % (Q[1], Q[1] + 3, VL16))
    a('s_lshl_b32 s26, s20, 12')
    a('s_add_u32 s27, s24, s26')
    a('s_cmp_lt_u32 s27, 16384')
    a('s_cbranch_scc1 AT_nodma')
    a('s_add_u32 s27, s23, s26')
    a('s_add_u32 s28, s27, %d' % (WS_QK + 4 * MB - 16384))
    a('s_add_u32 s29, s27, %d' % (WS_VT - 16384))
    a('s_add_u32 m0, s26, %d' % KOFF)
    a('s_nop 0')
    for e in range(4):
        a('buffer_load_dwordx4 v%d, s[8:11], s28 offen offset:%d lds' % (VL16, e * 1024))
    a('s_add_u32 m0, s26, %d' % VOFF)
    a('s_nop 0')
    for e in range(4):
        a('buffer_load_dwordx4 v%d, s[8:11], s29 offen offset:%d lds' % (VL16, e * 1024))
    a.label('AT_nodma')
    a('v_and_b32 v4, 15, v3')
    a('v_lshrrev_b32 v5, 4, v3')
    a('v_lshlrev_b32 v5, 2, v5')
    a('v_mov_b32 v6, 0x%x' % NEG)
    for r in range(4):
        a('v_add_u32 v7, %d, v5' % r)
        a('v_cmp_le_u32 vcc, v7, v4')
        a('s_nop 1')
        a('v_cndmask_b32 v%d, v6, 0, vcc' % (MC + r))
        a('v_cndmask_b32 v%d, 0, v6, vcc' % (ML + r))
        a('v_mov_b32 v%d, 0x3f803f80' % (ONES + r))
    for q in range(2):
        for d in range(3):
            for r in range(4):
                a('v_mov_b32 v%d, 0' % (O(q, d) + r))
        a('v_mov_b32 v%d, v6' % M[q])
    a('s_add_u32 s30, s20, 1')
    a('s_cmp_eq_u32 s22, 0')
    a('s_cselect_b32 s30, s30, 9')
    a('s_lshl_b32 s31, s20, 11')
    a('s_add_u32 s31, s31, %d' % (KOFF + 16384))
    a('s_waitcnt vmcnt(0)')
    a('s_barrier')

    def setC(kind, p2):
        tab = {'diag': {(0, 0): 'c', (0, 1): '0', (1, 0): 'n', (1, 1): 'c'},
               'mid': {(0, 0): '0', (0, 1): '0', (1, 0): '0', (1, 1): '0'},
               'first': {(0, 0): 'l', (0, 1): 'n', (1, 0): '0', (1, 1): 'l'}}[kind]
        for (T, q), k in tab.items():
            for r in range(4):
                d = C(T, q) + r
                if k == 'n':
                    a('v_mov_b32 v%d, v6' % d)
                elif k == '0':
                    a('v_mov_b32 v%d, %s' % (d, ('v%d' % M[q]) if p2 else '0'))
                else:
                    src = (MC if k == 'c' else ML) + r
                    if p2: a('v_add_f32 v%d, v%d, v%d' % (d, src, M[q]))
                    else: a('v_mov_b32 v%d, v%d' % (d, src))
    def rdK():
        a('ds_read_b128 v[%d:%d], v%d' % (KF[0], KF[0] + 3, VKA))
        a('ds_read_b128 v[%d:%d], v%d offset:1024' % (KF[1], KF[1] + 3, VKA))
        a('v_subrev_u32 v%d, 2048, v%d' % (VKA, VKA))
    def rdV():
        a('ds_read_b128 v[%d:%d], v%d offset:32768' % (VF[0], VF[0] + 3, VVA))
        a('ds_read_b128 v[%d:%d], v%d offset:33792' % (VF[1], VF[1] + 3, VVA))
        a('v_subrev_u32 v%d, 2048, v%d' % (VVA, VVA))
    def mfS(par):
        for q in range(2):
            for T in range(2):
                d = S(par, T, q); c = C(T, q)
                a('%s v[%d:%d], v[%d:%d], v[%d:%d], v[%d:%d]' % (MF, d, d + 3, KF[T], KF[T] + 3, Q[q], Q[q] + 3, c, c + 3))
    for p2 in (0, 1):
        L = 'AT%d_' % p2
        a('v_add_u32 v%d, s31, v%d' % (VKA, VL16))
        a('v_add_u32 v%d, s31, v%d' % (VVA, VL16))
        rdK()
        setC('diag', p2)
        a('s_mov_b32 s32, 0')
        a('s_waitcnt lgkmcnt(0)')
        mfS(0)
        rdK()
        a('s_nop 1')
        setC('mid', p2)
        a.label(L + 'loop')
        for par in range(2):
            if p2: rdV()
            a('s_cmp_lg_u32 s32, 7')
            a('s_cbranch_scc1 %sskip%d' % (L, par))
            setC('first', p2)
            a('s_nop 1')
            a.label(L + 'skip%d' % par)
            a('s_waitcnt lgkmcnt(%d)' % (2 if p2 else 0))
            mfS(1 - par)
            rdK()
            if not p2:
                for q in range(2):
                    b = S(par, 0, q)
                    for r in range(0, 8, 2):
                        a('v_max3_f32 v%d, v%d, v%d, v%d' % (M[q], M[q], b + r, b + r + 1))
            else:
                for q in range(2):
                    b = S(par, 0, q)
                    for r in range(8):
                        a('v_exp_f32 v%d, v%d' % (b + r, b + r))
                    if q == 1: a('s_nop 0')
                for q in range(2):
                    b = S(par, 0, q)
                    for r in range(4):
                        a('v_cvt_pk_bf16_f32 v%d, v%d, v%d' % (P[q] + r, b + 2 * r, b + 2 * r + 1))
                a('s_waitcnt lgkmcnt(2)')
                a('s_nop 0')
                for q in range(2):
                    for d in range(3):
                        o = O(q, d); src = VF[d] if d < 2 else ONES
                        a('%s v[%d:%d], v[%d:%d], v[%d:%d], v[%d:%d]' % (MF, o, o + 3, src, src + 3, P[q], P[q] + 3, o, o + 3))
            a('s_add_u32 s32, s32, 1')
            a('s_cmp_eq_u32 s32, s30')
            if par == 0:
                a('s_cbranch_scc1 %sdone' % L)
            else:
                a('s_cbranch_scc0 %sloop' % L)
        a.label(L + 'done')
        if not p2:
            for q in range(2):
                m = M[q]
                a('v_mov_b32 v7, v%d' % m)
                a('s_nop 1')
                a('v_permlane16_swap_b32 v%d, v7' % m)
                a('s_nop 1')
                a('v_max_f32 v%d, v%d, v7' % (m, m))
                a('v_mov_b32 v7, v%d' % m)
                a('s_nop 1')
                a('v_permlane32_swap_b32 v%d, v7' % m)
                a('s_nop 1')
                a('v_max_f32 v%d, v%d, v7' % (m, m))
                a('v_sub_f32 v%d, 0, v%d' % (m, m))
            a('s_waitcnt lgkmcnt(0)')
    a('s_lshl_b32 s33, s22, 2')
    a('s_lshr_b32 s34, s20, 1')
    a('s_add_u32 s33, s33, s34')
    a('s_mul_i32 s33, s33, %d' % HO_MG)
    a('s_lshl_b32 s34, s21, 12')
    a('s_add_u32 s33, s33, s34')
    a('s_and_b32 s34, s20, 1')
    a('s_lshl_b32 s34, s34, 11')
    a('s_add_u32 s33, s33, s34')
    a('s_add_u32 s33, s33, %d' % (WS_HO + 112 * 4096))
    a('s_nop 3')
    for q in range(2):
        a('v_rcp_f32 v7, v%d' % O(q, 2))
        a('s_nop 0')
        b = O(q, 0)
        for r in range(8):
            a('v_mul_f32 v%d, v%d, v7' % (b + r, b + r))
        for r in range(4):
            a('v_cvt_pk_bf16_f32 v%d, v%d, v%d' % (b + r, b + 2 * r, b + 2 * r + 1))
        a('buffer_store_dwordx4 v[%d:%d], v%d, s[8:11], s33 offen offset:%d' % (b, b + 3, VL16, q * 1024))
    a.label('AT_end')
    a('s_endpgm')
    return name, kd(name, 128, 128), (256, 512, 4096 + 65536)

def gen_gemm2(a, stamps=False):
    name = 'gemm2_kernel'
    kernel_begin(a, name)
    NT = 4; DA = 8
    ACC, SAV, XR = 0, 32, 64
    V_RD, V_D, V_A, V_O = 80, 84, 85, 86
    T0, T1, T2, T3 = 88, 89, 90, 91
    V_LANE = 92
    def acc(i, t): return (i * NT + t) * 4
    def bfrag(par, t): return 16 * par + 4 * t
    def afrag(slot, i): return 32 + 8 * slot + 4 * i
    S_WSRD, S_ASRD, S_XSRD, S_OSRD, S_BSRD = 20, 24, 28, 32, 36
    S_W, S_BOFF, S_AOFF, S_WOFF, S_CNT, S_OOFF, S_OOFF2 = 40, 41, 42, 43, 44, 45, 46
    a('s_cmp_ge_u32 s2, 256')
    a('s_cbranch_scc1 G2_end')
    a('s_load_dwordx2 s[4:5], s[0:1], %d' % KA_W2)
    a('s_load_dwordx2 s[6:7], s[0:1], %d' % KA_WO)
    a('s_load_dwordx2 s[8:9], s[0:1], %d' % KA_B2)
    a('s_load_dwordx2 s[10:11], s[0:1], %d' % KA_WS)
    a('s_load_dwordx2 s[12:13], s[0:1], %d' % KA_X)
    a('s_load_dwordx2 s[14:15], s[0:1], %d' % KA_OUT)
    if stamps:
        a('s_memrealtime s[90:91]')
        a('s_memtime s[92:93]')
    a('v_lshrrev_b32 v%d, 6, v0' % T0)
    a('v_and_b32 v%d, 63, v0' % V_LANE)
    a('v_readfirstlane_b32 s%d, v%d' % (S_W, T0))
    a('s_and_b32 s50, s2, 7')
    a('s_lshr_b32 s51, s2, 3')
    a('s_lshr_b32 s52, s50, 1')
    a('s_lshl_b32 s52, s52, 2')
    a('s_and_b32 s53, s51, 3')
    a('s_add_u32 s52, s52, s53')
    a('s_and_b32 s53, s50, 1')
    a('s_lshl_b32 s53, s53, 3')
    a('s_lshr_b32 s54, s51, 2')
    a('s_add_u32 s53, s53, s54')
    a('v_lshrrev_b32 v%d, 4, v%d' % (T0, V_LANE))
    a('v_bfe_u32 v%d, v%d, 2, 2' % (T1, V_LANE))
    a('v_and_b32 v%d, 1, v%d' % (T2, T0))
    a('v_lshl_add_u32 v%d, v%d, 2, v%d' % (T2, T2, T1))
    a('v_and_b32 v%d, 6, v%d' % (T3, T2))
    a('v_bfe_u32 v%d, v%d, 1, 1' % (T1, V_LANE))
    a('v_or_b32 v%d, v%d, v%d' % (T3, T3, T1))
    a('v_lshrrev_b32 v%d, 1, v%d' % (T0, T0))
    a('v_lshlrev_b32 v%d, 10, v%d' % (T0, T0))
    a('v_lshl_add_u32 v%d, v%d, 7, v%d' % (T0, T2, T0))
    a('v_and_b32 v%d, 1, v%d' % (T1, V_LANE))
    a('v_lshl_add_u32 v%d, v%d, 3, v%d' % (T0, T1, T0))
    for b in range(4):
        a('v_xor_b32 v%d, %d, v%d' % (T1, 2 * b, T3))
        a('v_lshl_add_u32 v%d, v%d, 4, v%d' % (V_RD + b, T1, T0))
    a('v_lshrrev_b32 v%d, 3, v%d' % (T0, V_LANE))
    a('v_and_b32 v%d, 6, v%d' % (T1, T0))
    a('v_and_b32 v%d, 7, v%d' % (T2, V_LANE))
    a('v_xor_b32 v%d, v%d, v%d' % (T1, T1, T2))
    a('v_lshlrev_b32 v%d, 11, v%d' % (T0, T0))
    a('v_lshl_add_u32 v%d, v%d, 4, v%d' % (V_D, T1, T0))
    a('s_lshl_b32 s55, s%d, 14' % S_W)
    a('s_lshl_b32 s56, s53, 7')
    a('s_add_u32 s55, s55, s56')
    a('v_add_u32 v%d, s55, v%d' % (V_D, V_D))
    a('v_lshlrev_b32 v%d, 4, v%d' % (V_A, V_LANE))
    a('v_and_b32 v%d, 15, v%d' % (T0, V_LANE))
    a('v_lshlrev_b32 v%d, 11, v%d' % (T0, T0))
    a('v_lshrrev_b32 v%d, 4, v%d' % (T1, V_LANE))
    a('v_lshl_add_u32 v%d, v%d, 3, v%d' % (V_O, T1, T0))
    a('v_lshlrev_b32 v%d, 3, v%d' % (T2, T1))
    a('s_lshl_b32 s57, s52, 18')
    a('s_lshl_b32 s58, s%d, 16' % S_W)
    a('s_add_u32 s57, s57, s58')
    a('s_add_u32 s%d, s57, s56' % S_OOFF)
    a('s_add_u32 s%d, s%d, 32768' % (S_OOFF2, S_OOFF))
    a('s_mov_b32 s%d, 0' % S_BOFF)
    a('s_and_b32 s%d, s%d, 1' % (S_AOFF, S_W))
    a('s_lshl_b32 s%d, s%d, 11' % (S_AOFF, S_AOFF))
    a('s_lshl_b32 s%d, s%d, 10' % (S_WOFF, S_W))
    a('s_lshl_b32 s58, s52, 1')
    a('s_lshr_b32 s59, s%d, 1' % S_W)
    a('s_add_u32 s58, s58, s59')
    a('s_mul_i32 s58, s58, %d' % HO_MG)
    a('s_add_u32 s58, s58, %d' % WS_HO)
    a('s_waitcnt lgkmcnt(0)')
    srd(a, S_WSRD, 4, 5, 3584 * 2048)
    a('s_add_u32 s60, s10, s58')
    a('s_addc_u32 s61, s11, 0')
    srd(a, S_ASRD, 60, 61, HO_MG)
    srd(a, S_BSRD, 8, 9, 2048)
    srd(a, S_XSRD, 12, 13, 4 * MB)
    srd(a, S_OSRD, 14, 15, 4 * MB)
    def m0_set(slot): return 's_add_u32 m0, s%d, %d' % (S_WOFF, slot * 4096)
    def dma(): return 'buffer_load_dwordx4 v%d, s[%d:%d], s%d offen%s lds' % (V_D, S_WSRD, S_WSRD + 3, S_BOFF, FL('w2f'))
    def adv_b(): return 's_add_u32 s%d, s%d, 65536' % (S_BOFF, S_BOFF)
    def aload(slot, i):
        b = afrag(slot, i)
        return 'buffer_load_dwordx4 a[%d:%d], v%d, s[%d:%d], s%d offen offset:%d%s' % (b, b + 3, V_A, S_ASRD, S_ASRD + 3, S_AOFF, i * 1024, FL('a2f'))
    def adv_a(): return 's_add_u32 s%d, s%d, 4096' % (S_AOFF, S_AOFF)
    def rd(k, t, s):
        b = bfrag(k & 1, t) + 2 * s
        return 'ds_read_b64_tr_b16 a[%d:%d], v%d offset:%d' % (b, b + 1, V_RD + t, (k % 16) * 4096 + s * 2048)
    for t in range(NT):
        d = acc(1, t) + 2
        a('buffer_load_dwordx2 v[%d:%d], v%d, s[%d:%d], s56 offen offset:%d' % (d, d + 1, T2, S_BSRD, S_BSRD + 3, t * 32))
    def vstep(v):
        if v >= -7:
            a(aload((v + 7) % DA, 0)); a(aload((v + 7) % DA, 1)); a(adv_a())
        a(m0_set((v + 10) % 16)); a('s_nop 0'); a(dma()); a(adv_b())
    for v in range(-10, -2):
        vstep(v)
    a('s_waitcnt vmcnt(18)')
    for t in range(NT):
        d = acc(1, t); e = acc(0, t)
        a('v_lshlrev_b32 v%d, 16, v%d' % (d, d + 2))
        a('v_and_b32 v%d, 0xffff0000, v%d' % (d + 1, d + 2))
        a('v_lshlrev_b32 v%d, 16, v%d' % (d + 2, d + 3))
        a('v_and_b32 v%d, 0xffff0000, v%d' % (d + 3, d + 3))
        for r in range(4):
            a('v_mov_b32 v%d, v%d' % (e + r, d + r))
    a('s_waitcnt vmcnt(12)')
    a('s_barrier')
    if stamps: a('s_memtime s[94:95]')
    for t in range(NT):
        a(rd(0, t, 0)); a(rd(0, t, 1))
    vstep(-2)
    for t in range(NT - 1):
        a(rd(1, t, 0)); a(rd(1, t, 1))
    vstep(-1)
    a('s_mov_b32 s%d, 0' % S_CNT)
    a('s_waitcnt lgkmcnt(0)')
    a.raw('.p2align 4')
    a.label('G2_loop')
    a('s_cmp_eq_u32 s%d, 7' % S_CNT)
    a('s_cbranch_scc1 G2_accsw')
    a.label('G2_accsw_ret')
    for k in range(16):
        fill = {}
        def put(p, ins): fill.setdefault(p, []).extend(ins if isinstance(ins, list) else [ins])
        if k % 2 == 0: a('s_waitcnt vmcnt(12) lgkmcnt(6)')
        else: a('s_waitcnt lgkmcnt(6)')
        if k % 4 == 2: a('s_barrier')
        if k == 6:
            a('s_cmp_eq_u32 s%d, 6' % S_CNT)
            a('s_cbranch_scc1 G2_srdsw')
            a.label('G2_srdsw_ret')
        put(0, rd(k + 1, NT - 1, 0)); put(1, rd(k + 1, NT - 1, 1))
        for t in range(1, NT):
            put(2 * t, rd(k + 2, t - 1, 0)); put(2 * t + 1, rd(k + 2, t - 1, 1))
        if 'noa2' not in OPT:
            put(0, aload((k + 7) % DA, 0)); put(2, aload((k + 7) % DA, 1))
        put(3, adv_a())
        put(4, m0_set((k + 10) % 16))
        if 'nodma2' not in OPT: put(5, dma())
        put(6, adv_b())
        for t in range(NT):
            for i in range(2):
                c = acc(i, t); W = bfrag(k & 1, t); X = afrag(k % DA, i)
                a('%s v[%d:%d], a[%d:%d], a[%d:%d], v[%d:%d]' % (MF, c, c + 3, W, W + 3, X, X + 3, c, c + 3))
                for x in fill.pop(2 * t + i, []): a(x)
        assert not fill
    a('s_add_u32 s%d, s%d, 1' % (S_CNT, S_CNT))
    a('s_cmp_lt_u32 s%d, 9' % S_CNT)
    a('s_cbranch_scc1 G2_loop')
    if stamps: a('s_memtime s[96:97]')
    a('s_mov_b32 s62, 0x%x' % f2u(-math.log2(math.e)))
    for i in range(2):
        for t in range(NT):
            g = SAV + acc(i, t)
            for r in range(4):
                a('v_mul_f32 v%d, s62, v%d' % (T0 + r, g + r))
            for r in range(4):
                a('v_exp_f32 v%d, v%d' % (T0 + r, T0 + r))
            a('s_nop 0')
            for r in range(4):
                a('v_add_f32 v%d, 1.0, v%d' % (T0 + r, T0 + r))
            for r in range(4):
                a('v_rcp_f32 v%d, v%d' % (T0 + r, T0 + r))
            a('s_nop 0')
            for r in range(4):
                a('v_mul_f32 v%d, v%d, v%d' % (g + r, g + r, T0 + r))
    for i in range(2):
        for t in range(NT):
            g = SAV + acc(i, t); sv = acc(i, t); x = XR + (i * NT + t) * 2
            a('v_lshlrev_b32 v%d, 16, v%d' % (T0, x))
            a('v_and_b32 v%d, 0xffff0000, v%d' % (T1, x))
            a('v_lshlrev_b32 v%d, 16, v%d' % (T2, x + 1))
            a('v_and_b32 v%d, 0xffff0000, v%d' % (T3, x + 1))
            for r in range(4):
                a('v_fmac_f32 v%d, v%d, v%d' % (T0 + r, sv + r, g + r))
            a('v_cvt_pk_bf16_f32 v%d, v%d, v%d' % (x, T0, T1))
            a('v_cvt_pk_bf16_f32 v%d, v%d, v%d' % (x + 1, T2, T3))
            a('buffer_store_dwordx2 v[%d:%d], v%d, s[%d:%d], s%d offen offset:%d' % (x, x + 1, V_O, S_OSRD, S_OSRD + 3, S_OOFF2 if i else S_OOFF, t * 32))
    if stamps:
        emit_stamps(a, S_W, 10, 65 * MB, S_ASRD)
    a.label('G2_end')
    a('s_endpgm')
    a.label('G2_accsw')
    for i in range(2):
        for t in range(NT):
            x = XR + (i * NT + t) * 2
            a('buffer_load_dwordx2 v[%d:%d], v%d, s[%d:%d], s%d offen offset:%d' % (x, x + 1, V_O, S_XSRD, S_XSRD + 3, S_OOFF2 if i else S_OOFF, t * 32))
    for r in range(0, 32, 2):
        a('v_pk_mov_b32 v[%d:%d], v[%d:%d], v[%d:%d] op_sel:[0,1]' % (SAV + r, SAV + r + 1, r, r + 1, r, r + 1))
    for r in range(0, 32, 2):
        a('v_pk_mov_b32 v[%d:%d], 0, 0' % (r, r + 1))
    a('s_nop 1')
    a('s_branch G2_accsw_ret')
    a.label('G2_srdsw')
    srd(a, S_WSRD, 6, 7, 1024 * 2048)
    a('s_mov_b32 s%d, 0' % S_BOFF)
    a('s_branch G2_srdsw_ret')
    return name, kd(name, 96 + 96, 96), (256, 256, 65536)

def emit_stamps(a, S_W, S_WS, off, S_SRD, nw_log=2, extra=False):
    a('s_waitcnt vmcnt(0)')
    a('s_memtime s[98:99]')
    a('s_memrealtime s[100:101]')
    a('s_waitcnt lgkmcnt(0)')
    a('s_sub_u32 s94, s94, s92')
    a('s_sub_u32 s96, s96, s92')
    a('s_sub_u32 s98, s98, s92')
    a('v_mov_b32 v0, s90')
    a('v_mov_b32 v1, s94')
    a('v_mov_b32 v2, s96')
    a('v_mov_b32 v3, s98')
    a('v_mov_b32 v4, s100')
    a('s_lshl_b32 s60, s2, %d' % nw_log)
    a('s_add_u32 s60, s60, s%d' % S_W)
    a('s_lshl_b32 s60, s60, 6')
    a('v_mov_b32 v8, s60')
    a('s_add_u32 s62, s%d, %d' % (S_WS, off))
    a('s_addc_u32 s63, s%d, 0' % (S_WS + 1))
    srd(a, S_SRD, 62, 63, 1 * MB)
    a('buffer_store_dwordx4 v[0:3], v8, s[%d:%d], 0 offen' % (S_SRD, S_SRD + 3))
    a('buffer_store_dword v4, v8, s[%d:%d], 0 offen offset:16' % (S_SRD, S_SRD + 3))
    if extra:
        for n in range(4):
            a('s_sub_u32 s%d, s%d, s92' % (70 + 2 * n, 70 + 2 * n))
            a('v_mov_b32 v%d, s%d' % (12 + n, 70 + 2 * n))
        a('buffer_store_dwordx4 v[12:15], v8, s[%d:%d], 0 offen offset:32' % (S_SRD, S_SRD + 3))

SPIN_MAX = 400000
WS_FLAG = 44 * MB
WS_END = 45 * MB
WS_P = 36 * MB
def gen_k3(a, stamps=False):
    name = 'k3_kernel'
    M32 = 'v_mfma_f32_32x32x16_bf16'
    kernel_begin(a, name)
    ACC, SACC, PIN, WF, AF = 0, 64, 96, 128, 160
    V_RD, V_D0, V_D1, V_A, V_O, V_FLAG, V_Z, V_LANE = 224, 226, 227, 228, 229, 230, 231, 232
    V_P, V_B, V_PF = 233, 234, 235
    S_QSRD, S_QOFF, S_QSTR = 52, 56, 59
    T0 = 236
    XR = 240
    BR = 32
    def wfrag(n): return WF + 4 * n
    def afrag(slot, mf): return AF + 8 * slot + 4 * mf
    S_WSRD, S_ASRD, S_XSRD, S_OSRD, S_BSRD, S_FSRD, S_PSRD = 20, 24, 28, 32, 36, 64, 76
    S_W, S_BOFF, S_AOFF, S_T, S_CNT, S_OOFF, S_ROLE, S_TILE = 40, 41, 42, 43, 44, 45, 46, 47
    S_TEND, S_T0, S_RPOS, S_RDELTA, S_FOFF, S_FMINE, S_FPART = 48, 49, 68, 69, 63, 62, 75
    S_POUT, S_PINO, S_COL = 80, 81, 82
    RING = 81920
    a('s_cmp_ge_u32 s2, 256')
    a('s_cbranch_scc1 K3_att')
    a('s_load_dwordx2 s[4:5], s[0:1], %d' % KA_W2)
    a('s_load_dwordx2 s[10:11], s[0:1], %d' % KA_WS)
    a('s_load_dwordx2 s[6:7], s[0:1], %d' % KA_WO)
    a('s_load_dwordx2 s[8:9], s[0:1], %d' % KA_B2)
    a('s_load_dwordx2 s[12:13], s[0:1], %d' % KA_X)
    a('s_load_dwordx2 s[16:17], s[0:1], %d' % KA_OUT)
    if stamps:
        a('s_memrealtime s[90:91]')
        a('s_memtime s[92:93]')
    if OV('gprio0', 3): a('s_setprio %d' % OV('gprio0', 3))
    a('v_lshrrev_b32 v%d, 6, v0' % T0)
    a('v_and_b32 v%d, 63, v0' % V_LANE)
    a('v_readfirstlane_b32 s%d, v%d' % (S_W, T0))
    a('s_and_b32 s50, s2, 7')
    a('s_lshr_b32 s51, s2, 3')
    if OV('map3', 0) == 0:
        a('s_lshr_b32 s%d, s51, 4' % S_ROLE)
        a('s_lshr_b32 s52, s50, 1')
        a('s_lshl_b32 s52, s52, 2')
        a('s_and_b32 s53, s51, 3')
        a('s_add_u32 s52, s52, s53')
        a('s_and_b32 s53, s50, 1')
        a('s_lshl_b32 s53, s53, 2')
        a('s_bfe_u32 s54, s51, 0x20002')
        a('s_add_u32 s53, s53, s54')
    elif OV('map3', 0) == 2:
        a('s_and_b32 s%d, s50, 1' % S_ROLE)
        a('s_lshr_b32 s52, s50, 1')
        a('s_lshl_b32 s52, s52, 2')
        a('s_and_b32 s53, s51, 3')
        a('s_add_u32 s52, s52, s53')
        a('s_lshr_b32 s53, s51, 2')
    else:
        a('s_lshr_b32 s%d, s50, 2' % S_ROLE)
        a('s_bfe_u32 s52, s50, 0x10001')
        a('s_lshl_b32 s52, s52, 3')
        a('s_and_b32 s53, s51, 7')
        a('s_add_u32 s52, s52, s53')
        a('s_and_b32 s53, s50, 1')
        a('s_lshl_b32 s53, s53, 2')
        a('s_lshr_b32 s54, s51, 3')
        a('s_add_u32 s53, s53, s54')
    a('s_lshl_b32 s%d, s52, 3' % S_TILE)
    a('s_add_u32 s%d, s%d, s53' % (S_TILE, S_TILE))
    a('v_lshrrev_b32 v%d, 3, v%d' % (T0, V_LANE))
    a('v_and_b32 v%d, 2, v%d' % (T0 + 1, T0))
    a('v_lshlrev_b32 v%d, 1, v%d' % (T0 + 1, T0 + 1))
    a('v_and_b32 v%d, 7, v%d' % (T0 + 2, V_LANE))
    a('v_xor_b32 v%d, v%d, v%d' % (T0 + 1, T0 + 1, T0 + 2))
    a('v_lshlrev_b32 v%d, 11, v%d' % (T0, T0))
    a('v_lshl_add_u32 v%d, v%d, 4, v%d' % (V_D0, T0 + 1, T0))
    a('s_lshl_b32 s55, s%d, 14' % S_W)
    a('s_lshl_b32 s56, s53, 8')
    a('s_lshl_b32 s57, s%d, 7' % S_ROLE)
    a('s_add_u32 s%d, s56, s57' % S_COL)
    a('s_add_u32 s55, s55, s%d' % S_COL)
    a('v_add_u32 v%d, s55, v%d' % (V_D0, V_D0))
    a('v_xor_b32 v%d, 128, v%d' % (V_D1, V_D0))
    a('v_bfe_u32 v%d, v%d, 4, 1' % (T0, V_LANE))
    a('v_lshlrev_b32 v%d, 10, v%d' % (T0, T0))
    a('v_lshrrev_b32 v%d, 5, v%d' % (T0 + 1, V_LANE))
    a('v_lshl_add_u32 v%d, v%d, 8, v%d' % (T0, T0 + 1, T0))
    a('v_and_b32 v%d, 15, v%d' % (T0 + 2, V_LANE))
    a('v_lshl_add_u32 v%d, v%d, 4, v%d' % (V_A, T0 + 2, T0))
    a('s_mul_i32 s%d, s%d, %d' % (S_BOFF, S_ROLE, 56 * 65536))
    a('s_mul_i32 s%d, s%d, %d' % (S_AOFF, S_ROLE, 56 * 4096))
    a('s_lshl_b32 s%d, s%d, 11' % (S_T0, S_W))
    a('s_mov_b32 s%d, s%d' % (S_T, S_T0))
    a('s_add_u32 s%d, s%d, %d' % (S_TEND, S_T0, RING))
    a('s_lshl_b32 s58, s52, 1')
    a('s_lshr_b32 s59, s%d, 1' % S_W)
    a('s_add_u32 s58, s58, s59')
    a('s_mul_i32 s58, s58, %d' % HO_MG)
    a('s_and_b32 s57, s%d, 1' % S_W)
    a('s_lshl_b32 s57, s57, 11')
    a('s_add_u32 s58, s58, s57')
    a('s_add_u32 s58, s58, %d' % WS_HO)
    a('s_waitcnt lgkmcnt(0)')
    srd(a, S_WSRD, 4, 5, 3584 * 2048)
    a('s_add_u32 s60, s10, s58')
    a('s_addc_u32 s61, s11, 0')
    srd(a, S_ASRD, 60, 61, HO_MG - 2048)
    def m0_set(nb): return 's_add_u32 m0, s%d, %d' % (S_T, nb * 1024)
    def dma(nb): return 'buffer_load_dwordx4 v%d, s[%d:%d], s%d offen%s lds' % (V_D1 if nb else V_D0, S_WSRD, S_WSRD + 3, S_BOFF, FL('w2f'))
    def adv_b(): return ['s_add_u32 s%d, s%d, 65536' % (S_BOFF, S_BOFF), 's_add_u32 s%d, s%d, 8192' % (S_T, S_T)]
    def wrap_b(): return ['s_cmp_eq_u32 s%d, s%d' % (S_T, S_TEND), 's_cselect_b32 s%d, s%d, s%d' % (S_T, S_T0, S_T)]
    def aload(slot, mf):
        b = afrag(slot, mf)
        return 'buffer_load_dwordx4 v[%d:%d], v%d, s[%d:%d], s%d offen offset:%d sc1' % (b, b + 3, V_A, S_ASRD, S_ASRD + 3, S_AOFF, mf * 512)
    def adv_a(): return 's_add_u32 s%d, s%d, 4096' % (S_AOFF, S_AOFF)
    def rd(q, n, s_, dst=None):
        mf, T = n >> 2, n & 3
        b = wfrag(n if dst is None else dst) + 2 * s_
        return 'ds_read_b64_tr_b16 v[%d:%d], v%d offset:%d' % (b, b + 1, V_RD + (T & 1), q * 8192 + (2 * s_ + mf) * 2048 + (T >> 1) * 1024)
    def vstep(v):
        for nb in range(2):
            a(m0_set(nb)); a('s_nop 0'); a(dma(nb))
        for x in adv_b(): a(x)
        a(aload((v + 7) % 8, 0)); a(aload((v + 7) % 8, 1)); a(adv_a())
    vstep(-7); vstep(-6)
    a('v_lshrrev_b32 v%d, 5, v%d' % (T0, V_LANE))
    a('v_bfe_u32 v%d, v%d, 2, 2' % (T0 + 1, V_LANE))
    a('v_lshl_add_u32 v%d, v%d, 2, v%d' % (T0, T0, T0 + 1))
    a('v_lshlrev_b32 v%d, 7, v%d' % (T0, T0))
    a('v_bfe_u32 v%d, v%d, 4, 1' % (T0 + 2, V_LANE))
    a('v_lshl_add_u32 v%d, v%d, 5, v%d' % (T0, T0 + 2, T0))
    a('v_and_b32 v%d, 1, v%d' % (T0 + 2, V_LANE))
    a('v_lshl_add_u32 v%d, v%d, 4, v%d' % (T0, T0 + 2, T0))
    a('v_bfe_u32 v%d, v%d, 1, 1' % (T0 + 2, V_LANE))
    a('v_lshl_add_u32 v%d, v%d, 3, v%d' % (T0, T0 + 2, T0))
    a('v_bfe_u32 v%d, v%d, 3, 1' % (T0 + 2, V_LANE))
    a('v_lshl_add_u32 v%d, v%d, 6, v%d' % (V_RD, T0 + 2, T0))
    a('v_xor_b32 v%d, 64, v%d' % (V_RD + 1, V_RD))
    for r in range(0, 64, 2):
        a('v_pk_mov_b32 v[%d:%d], 0, 0' % (r, r + 1))
    vstep(-5); vstep(-4)
    srd(a, S_BSRD, 8, 9, 2048)
    srd(a, S_XSRD, 12, 13, 4 * MB)
    srd(a, S_OSRD, 16, 17, 4 * MB)
    a('s_add_u32 s60, s10, %d' % WS_FLAG)
    a('s_addc_u32 s61, s11, 0')
    srd(a, S_FSRD, 60, 61, 131072)
    a('s_add_u32 s60, s10, %d' % WS_P)
    a('s_addc_u32 s61, s11, 0')
    srd(a, S_PSRD, 60, 61, 8 * MB)
    a('v_and_b32 v%d, 31, v%d' % (T0, V_LANE))
    a('v_lshlrev_b32 v%d, 2, v%d' % (V_Z, T0))
    a('v_lshlrev_b32 v%d, 11, v%d' % (T0, T0))
    a('v_lshrrev_b32 v%d, 5, v%d' % (T0 + 1, V_LANE))
    a('v_lshl_add_u32 v%d, v%d, 4, v%d' % (V_O, T0 + 1, T0))
    a('v_lshlrev_b32 v%d, 4, v%d' % (V_B, T0 + 1))
    a('v_lshlrev_b32 v%d, 4, v%d' % (V_P, V_LANE))
    a('s_lshl_b32 s57, s52, 18')
    a('s_lshl_b32 s58, s%d, 16' % S_W)
    a('s_add_u32 s57, s57, s58')
    a('s_add_u32 s%d, s57, s%d' % (S_OOFF, S_COL))
    a('s_lshr_b32 s%d, s52, 1' % S_FOFF)
    a('s_lshl_b32 s%d, s%d, 12' % (S_FOFF, S_FOFF))
    a('s_lshl_b32 s57, s%d, 1' % S_TILE)
    a('s_add_u32 s57, s57, s%d' % S_ROLE)
    a('s_lshl_b32 s%d, s57, 8' % S_FMINE)
    a('s_add_u32 s%d, s%d, 65536' % (S_FMINE, S_FMINE))
    a('s_xor_b32 s%d, s%d, 256' % (S_FPART, S_FMINE))
    a('s_lshl_b32 s57, s57, 15')
    a('s_lshl_b32 s58, s%d, 13' % S_W)
    a('s_add_u32 s%d, s57, s58' % S_POUT)
    a('s_xor_b32 s%d, s%d, 32768' % (S_PINO, S_POUT))
    PF = 'nopf3' not in OPT
    PD = OV('pd', 2)
    if PF:
        assert OV('map3', 0) == 0
        a('s_mov_b32 s18, s52')
        a('s_mov_b32 s19, s53')
        a('s_cmp_ge_u32 s%d, 2' % S_W)
        a('s_cbranch_scc1 K3_pfw')
        a('s_lshl_b32 s57, s18, 1')
        a('s_add_u32 s57, s57, s%d' % S_W)
        a('s_mul_i32 s57, s57, %d' % HO_MG)
        a('s_add_u32 s57, s57, %d' % WS_HO)
        a('s_add_u32 s60, s10, s57')
        a('s_addc_u32 s61, s11, 0')
        srd(a, S_QSRD, 60, 61, 112 * 4096)
        a('s_and_b32 s57, s19, 3')
        a('s_lshl_b32 s57, s57, 13')
        a('s_mul_i32 s%d, s%d, %d' % (S_QOFF, S_ROLE, 56 * 4096))
        a('s_add_u32 s%d, s%d, s57' % (S_QOFF, S_QOFF))
        a('s_mov_b32 s%d, 32768' % S_QSTR)
        a('v_lshlrev_b32 v%d, 7, v%d' % (V_PF, V_LANE))
        a('s_branch K3_pfd')
        a.label('K3_pfw')
        srd(a, S_QSRD, 4, 5, 3584 * 2048)
        a('s_and_b32 s57, s18, 3')
        a('s_lshl_b32 s57, s57, 1')
        a('s_add_u32 s57, s57, s%d' % S_W)
        a('s_sub_u32 s57, s57, 2')
        a('s_lshl_b32 s57, s57, 16')
        a('s_mul_i32 s%d, s%d, %d' % (S_QOFF, S_ROLE, 56 * 65536))
        a('s_add_u32 s%d, s%d, s57' % (S_QOFF, S_QOFF))
        a('s_lshl_b32 s57, s19, 8')
        a('s_add_u32 s%d, s%d, s57' % (S_QOFF, S_QOFF))
        a('s_mov_b32 s%d, 524288' % S_QSTR)
        a('v_lshrrev_b32 v%d, 1, v%d' % (T0, V_LANE))
        a('v_lshlrev_b32 v%d, 11, v%d' % (T0, T0))
        a('v_and_b32 v%d, 1, v%d' % (T0 + 1, V_LANE))
        a('v_lshl_add_u32 v%d, v%d, 7, v%d' % (V_PF, T0 + 1, T0))
        a.label('K3_pfd')
        a('s_add_u32 s%d, s%d, s%d' % (S_QOFF, S_QOFF, S_QSTR))
    def pf():
        return ['buffer_load_dword v%d, v%d, s[%d:%d], s%d offen%s' % (T0 + 3, V_PF, S_QSRD, S_QSRD + 3, S_QOFF, FL('pf3f')),
                's_add_u32 s%d, s%d, s%d' % (S_QOFF, S_QOFF, S_QSTR)]
    a('s_waitcnt vmcnt(8)')
    a('s_barrier')
    if stamps: a('s_memtime s[94:95]')
    for n in range(8):
        a(rd(0, n, 0)); a(rd(0, n, 1))
        if n == 3: a('s_waitcnt lgkmcnt(2)')
    vstep(-3); vstep(-2); vstep(-1)
    if PF:
        for i in range(PD - 1):
            for x in pf(): a(x)
    a('s_mov_b32 s%d, 0' % S_CNT)
    a('s_mov_b32 s%d, 0' % S_RPOS)
    a('s_mov_b32 s70, 0x%x' % ((-(RING - 16384)) & 0xffffffff))
    a('s_mov_b32 s71, 16384')
    a('s_setprio %d' % OV('gprio', 0))
    a('s_waitcnt lgkmcnt(0)')
    a.raw('.p2align 4')
    a.label('K3_loop')
    for k in range(8):
        odd = k & 1
        fill = {}
        def put(p, ins): fill.setdefault(p, []).extend(ins if isinstance(ins, list) else [ins])
        if odd:
            a('s_waitcnt vmcnt(16)')
            a('s_barrier')
            a('v_add_u32 v%d, s%d, v%d' % (V_RD, S_RDELTA, V_RD))
            a('v_add_u32 v%d, s%d, v%d' % (V_RD + 1, S_RDELTA, V_RD + 1))
        if k == 1:
            a('s_cmp_eq_u32 s%d, 6' % S_CNT)
            a('s_cbranch_scc1 K3_osw')
            a.label('K3_osw_ret')
            if 'oswst' in OPT: a('s_memtime s[86:87]')
        if k == 1 and PF:
            a('s_cmp_eq_u32 s%d, %d' % (S_CNT, 7 - PD))
            a('s_cbranch_scc1 K3_pfwo')
            a.label('K3_pfwo_ret')
            put(0, pf())
        if k == 4 and 'xlate' not in OPT:
            a('s_cmp_lt_u32 s%d, 4' % S_CNT)
            a('s_cbranch_scc1 K3_xl')
            a.label('K3_xl_ret')
        if k == 6:
            a('s_cmp_eq_u32 s%d, 5' % S_CNT)
            a('s_cbranch_scc1 K3_fl')
            a.label('K3_fl_ret')
        for n in range(8):
            put(n, [rd(1 - odd, n, 0), rd(1 - odd, n, 1)])
        put(0, m0_set(0));
        if 'nodma2' not in OPT: put(1, dma(0))
        put(2, m0_set(1))
        if 'nodma2' not in OPT: put(3, dma(1))
        put(3, adv_b()[0]); put(4, adv_b()[1]); put(4, wrap_b())
        if 'noa2' not in OPT:
            put(5, aload((k + 7) % 8, 0)); put(6, aload((k + 7) % 8, 1))
        put(7, adv_a())
        if not odd:
            put(6, ['s_add_u32 s%d, s%d, 1' % (S_RPOS, S_RPOS), 's_cmp_eq_u32 s%d, 5' % S_RPOS,
                    's_cselect_b32 s%d, s70, s71' % S_RDELTA, 's_cselect_b32 s%d, 0, s%d' % (S_RPOS, S_RPOS)])
        for n in range(8):
            if n % 2 == 0: a('s_waitcnt lgkmcnt(12)')
            mf, T = n >> 2, n & 3
            c = ACC + 16 * T; W = wfrag(n); X = afrag(k, mf)
            a('%s v[%d:%d], v[%d:%d], v[%d:%d], v[%d:%d]' % (M32, c, c + 15, W, W + 3, X, X + 3, c, c + 15))
            for x in fill.pop(n, []): a(x)
        assert not fill
    a('s_add_u32 s%d, s%d, 1' % (S_CNT, S_CNT))
    a('s_cmp_lt_u32 s%d, 7' % S_CNT)
    a('s_cbranch_scc1 K3_loop')
    if stamps: a('s_memtime s[96:97]')
    vq = []
    for j in range(0, 7):
        vq += [('D', j), ('Dx', j), ('A', j), ('A', j)]
    def need(tags):
        idx = [i for i, t in enumerate(vq) if t in tags]
        assert len(set(vq[i] for i in idx)) == len(set(tags)), (tags, vq)
        return len(vq) - 1 - max(idx)
    ST0, STS = OV('st0', 0), OV('sts', 1)
    FSTEP = OV('fstep', 5)
    PFL, PCHK = OV('pfl', 12), OV('pchk', 16)
    XB = OV('xb', 6); XW = OV('xw', 9)
    BRAW = ACC + 32 if 'xlate' in OPT else PIN
    c_nl2e = 's72'
    PB = 'pbf16' in OPT
    early = []
    XU = ACC + 32
    for e in range(16):
        early.append('v_lshlrev_b32 v%d, 16, v%d' % (T0, BRAW + e))
        early.append('v_and_b32 v%d, 0xffff0000, v%d' % (T0 + 1, BRAW + e))
        early.append('v_add_f32 v%d, v%d, v%d' % (2 * e, 2 * e, T0))
        early.append('v_add_f32 v%d, v%d, v%d' % (2 * e + 1, 2 * e + 1, T0 + 1))
    for e in range(16):
        early.append('v_lshlrev_b32 v%d, 16, v%d' % (XU + 2 * e, XR + e))
        early.append('v_and_b32 v%d, 0xffff0000, v%d' % (XU + 2 * e + 1, XR + e))
    late = []
    for u in range(4):
        g = 8 * u; p = PIN + 8 * u
        blk = []
        if PB:
            for r in range(4):
                raw = PIN + 16 + 4 * u + r
                blk.append('v_lshlrev_b32 v%d, 16, v%d' % (p + 2 * r, raw))
                blk.append('v_and_b32 v%d, 0xffff0000, v%d' % (p + 2 * r + 1, raw))
        for r in range(8): blk.append('v_add_f32 v%d, v%d, v%d' % (g + r, g + r, p + r))
        for r in range(8): blk.append('v_mul_f32 v%d, %s, v%d' % (p + r, c_nl2e, g + r))
        for r in range(8): blk.append('v_exp_f32 v%d, v%d' % (p + r, p + r))
        for r in range(8): blk.append('v_add_f32 v%d, 1.0, v%d' % (p + r, p + r))
        for r in range(8): blk.append('v_rcp_f32 v%d, v%d' % (p + r, p + r))
        for r in range(8): blk.append('v_mul_f32 v%d, v%d, v%d' % (g + r, g + r, p + r))
        late.append((('P', u), blk))
    a('s_mov_b32 s72, 0x%x' % f2u(-math.log2(math.e)))
    stage = 28
    early_steps = list(range(XB + XW, PCHK + 5)) if 'xlate' in OPT else list(range(FSTEP + 1, PCHK))
    late_steps = list(range(PCHK + OV('lw', 5), 32))
    late_flat = []
    for tag, blk in late:
        late_flat.append(('W', tag))
        late_flat += blk
    VPS = OV('vps', 18)
    for j in range(32):
        odd = j & 1
        fill = {0: [], 1: [], 2: [], 3: []}
        tags = set()
        if odd:
            for jj in (j + 1, j + 2):
                if jj < 32: tags.add(('D', jj))
            for jj in (j, j + 1):
                if jj < 32: tags.add(('A', jj))
        if 'xlate' in OPT and j == XB + XW: tags |= {('X', 0), ('B', 0)}
        if j == FSTEP:
            a('s_waitcnt vmcnt(0)')
        elif tags:
            a('s_waitcnt vmcnt(%d)' % need(tags))
        if odd and j + 1 < 32:
            a('s_barrier')
            ns = stage + 1
            delta = ((ns % 5) - (stage % 5)) * 16384
            stage = ns
            a('v_add_u32 v%d, 0x%x, v%d' % (V_RD, delta & 0xffffffff, V_RD))
            a('v_add_u32 v%d, 0x%x, v%d' % (V_RD + 1, delta & 0xffffffff, V_RD + 1))
        if j == FSTEP:
            a('s_cmp_lg_u32 s%d, 0' % S_W)
            a('s_cbranch_scc1 K3_nofl')
            a('v_mov_b32 v%d, 1' % T0)
            a('buffer_store_dword v%d, v%d, s[%d:%d], s%d offen sc1' % (T0, V_Z, S_FSRD, S_FSRD + 3, S_FMINE))
            a.label('K3_nofl')
        if j == PCHK:
            a('s_waitcnt vmcnt(%d)' % need({('F', 0)}))
            a('v_cmp_eq_u32 vcc, 1, v%d' % V_FLAG)
            a('s_nop 1')
            a('s_cmp_eq_u64 vcc, -1')
            a('s_cbranch_scc0 K3_pspin')
            a.label('K3_pgo')
        if stamps:
            pts = [int(x) for x in (FL('pts').strip() or '8,12,20,24').split(',')]
            if j in pts: a('s_memtime s[%d:%d]' % (84 + 2 * pts.index(j) if pts.index(j) < 3 else 14, 85 + 2 * pts.index(j) if pts.index(j) < 3 else 15))
        par = j & 1
        def oset(par_, mf, T): return mf * 4 + T + 2 * par_
        if j + 1 < 32:
            rds = []
            for mf in range(2):
                for T in range(2):
                    for s_ in range(2):
                        rds.append(rd(1 - odd, mf * 4 + T, s_, dst=oset(1 - par, mf, T)))
            fill[0] += rds[0:3]; fill[1] += rds[3:6]; fill[2] += rds[6:8]
        vm = []
        if j + 7 < 32:
            slot = (56 + j + 7) % 10
            fill[0].append('s_add_u32 m0, s%d, %d' % (S_T0, slot * 8192))
            vm.append((1, ('D', j + 7), [dma(0), adv_b()[0]]))
            vm.append((2, ('A', j + 7), [aload((j + 7) % 8, 0)]))
            vm.append((3, ('A', j + 7), [aload((j + 7) % 8, 1), adv_a()]))
        SPS = OV('sps', 8)
        if PB and j == 0:
            for e in range(4):
                cv = ['v_cvt_pk_bf16_f32 v%d, v%d, v%d' % (ACC + 32 + 4 * e + r, ACC + 32 + 8 * e + 2 * r, ACC + 33 + 8 * e + 2 * r) for r in range(4)]
                vm.append((1 + e * 3 // 4, ('S', e), cv + ['buffer_store_dwordx4 v[%d:%d], v%d, s[%d:%d], s%d offen offset:%d sc1' %
                           (ACC + 32 + 4 * e, ACC + 35 + 4 * e, V_P, S_PSRD, S_PSRD + 3, S_POUT, e * 1024)]))
        for e in range(j * SPS, min(8, (j + 1) * SPS)) if not PB else []:
            pre = ['s_add_u32 s57, s%d, 4096' % S_POUT] if e == 4 else []
            vm.append((3 if SPS < 4 else 1 + (e % SPS) * 3 // SPS, ('S', e), pre + ['buffer_store_dwordx4 v[%d:%d], v%d, s[%d:%d], s%d offen offset:%d sc1' %
                       (ACC + 32 + 4 * e, ACC + 35 + 4 * e, V_P, S_PSRD, S_PSRD + 3, 57 if e >= 4 else S_POUT, (e % 4) * 1024)]))
        if 'xlate' in OPT and XB <= j < XB + 4:
            u = j - XB
            vm.append((3, ('B', 0), ['buffer_load_dwordx4 v[%d:%d], v%d, s[%d:%d], s%d offen offset:%d' % (BRAW + 4 * u, BRAW + 4 * u + 3, V_B, S_BSRD, S_BSRD + 3, S_COL, u * 32)]))
            vm.append((3, ('X', 0), ['buffer_load_dwordx4 v[%d:%d], v%d, s[%d:%d], s%d offen offset:%d' % (XR + 4 * u, XR + 4 * u + 3, V_O, S_XSRD, S_XSRD + 3, S_OOFF, u * 32)]))
        if j == PFL:
            vm.append((3, ('F', 0), ['buffer_load_dword v%d, v%d, s[%d:%d], s%d offen sc1' % (V_FLAG, V_Z, S_FSRD, S_FSRD + 3, S_FPART)]))
        if PB and PCHK <= j < PCHK + 2:
            for h in range(2):
                u = 2 * (j - PCHK) + h
                vm.append((h, ('P', u), ['buffer_load_dwordx4 v[%d:%d], v%d, s[%d:%d], s%d offen offset:%d sc1' %
                           (PIN + 16 + 4 * u, PIN + 19 + 4 * u, V_P, S_PSRD, S_PSRD + 3, S_PINO, u * 1024)]))
        if not PB and PCHK <= j < PCHK + 4:
            u = j - PCHK
            pre = ['s_add_u32 s57, s%d, 4096' % S_PINO] if u == 2 else []
            for h in range(2):
                e = 2 * u + h
                vm.append((h, ('P', u), (pre if h == 0 else []) + ['buffer_load_dwordx4 v[%d:%d], v%d, s[%d:%d], s%d offen offset:%d sc1' %
                           (PIN + 4 * e, PIN + 4 * e + 3, V_P, S_PSRD, S_PSRD + 3, 57 if e >= 4 else S_PINO, (e % 4) * 1024)]))
        sh = []
        if j in early_steps:
            n = -(-len(early) // (early_steps[-1] - j + 1))
            sh = early[:n]; early = early[n:]
        if j in late_steps:
            sh = late_flat[:VPS]; late_flat = late_flat[VPS:]
        a('s_waitcnt lgkmcnt(0)') if j > 0 else a('s_waitcnt lgkmcnt(4)')
        for g in range(4):
            mf, T = g >> 1, g & 1
            c = SACC + 16 * T; W = wfrag(oset(par, mf, T)); X = afrag(j % 8, mf)
            cs = '0' if (j == 0 and mf == 0) else 'v[%d:%d]' % (c, c + 15)
            a('%s v[%d:%d], v[%d:%d], v[%d:%d], %s' % (M32, c, c + 15, W, W + 3, X, X + 3, cs))
            for x in fill[g]: a(x)
            for (gg, tag, ins) in vm:
                if gg == g:
                    for x in ins: a(x)
                    vq.append(tag)
            lo = g * len(sh) // 4; hi = (g + 1) * len(sh) // 4
            for x in sh[lo:hi]:
                if isinstance(x, tuple): a('s_waitcnt vmcnt(%d)' % need({x[1]}))
                else: a(x)
    assert not early
    for x in late_flat:
        if isinstance(x, tuple): a('s_waitcnt vmcnt(%d)' % need({x[1]}))
        else: a(x)
    a('s_nop 7')
    a('s_nop 3')
    for u in range(4):
        g = 8 * u
        for r in range(8):
            a('v_fmac_f32 v%d, v%d, v%d' % (XU + g + r, g + r, SACC + g + r))
        for r in range(4):
            a('v_cvt_pk_bf16_f32 v%d, v%d, v%d' % (XR + 4 * u + r, XU + g + 2 * r, XU + g + 2 * r + 1))
        a('buffer_store_dwordx4 v[%d:%d], v%d, s[%d:%d], s%d offen offset:%d%s' % (XR + 4 * u, XR + 4 * u + 3, V_O, S_OSRD, S_OSRD + 3, S_OOFF, u * 32, FL('s3f')))
    if stamps:
        a('s_waitcnt lgkmcnt(0)')
        a('s_mov_b32 s70, s84'); a('s_mov_b32 s72, s86'); a('s_mov_b32 s74, s88'); a('s_mov_b32 s76, s14')
        emit_stamps(a, S_W, 10, 65 * MB, S_ASRD, extra=True)
    a('s_endpgm')
    def spin(lbl, foff, ret):
        a.label(lbl)
        a('s_mov_b32 s74, 0')
        a.label(lbl + '_l')
        a('s_sleep %d' % OV('slp', 4))
        a('buffer_load_dword v%d, v%d, s[%d:%d], s%d offen sc1' % (V_FLAG, V_Z, S_FSRD, S_FSRD + 3, foff))
        a('s_add_u32 s74, s74, 1')
        a('s_cmp_gt_u32 s74, %d' % SPIN_MAX)
        a('s_cbranch_scc1 %s' % ret)
        a('s_waitcnt vmcnt(0)')
        a('v_cmp_eq_u32 vcc, 1, v%d' % V_FLAG)
        a('s_nop 1')
        a('s_cmp_eq_u64 vcc, -1')
        a('s_cbranch_scc0 %s_l' % lbl)
        a('s_branch %s' % ret)
    spin('K3_pspin', S_FPART, 'K3_pgo')
    spin('K3_ospin', S_FOFF, 'K3_osw_ret')
    if 'xlate' not in OPT:
        a.label('K3_xl')
        for u in range(4):
            if u < 3:
                a('s_cmp_lg_u32 s%d, %d' % (S_CNT, u))
                a('s_cbranch_scc1 K3_xl%d' % u)
            a('buffer_load_dwordx4 v[%d:%d], v%d, s[%d:%d], s%d offen offset:%d' % (XR + 4 * u, XR + 4 * u + 3, V_O, S_XSRD, S_XSRD + 3, S_OOFF, u * 32))
            if u == 3:
                for w_ in range(4):
                    a('buffer_load_dwordx4 v[%d:%d], v%d, s[%d:%d], s%d offen offset:%d' % (BRAW + 4 * w_, BRAW + 4 * w_ + 3, V_B, S_BSRD, S_BSRD + 3, S_COL, w_ * 32))
            a('s_branch K3_xl_ret')
            if u < 3: a.label('K3_xl%d' % u)
    a.label('K3_fl')
    a('buffer_load_dword v%d, v%d, s[%d:%d], s%d offen sc1' % (V_FLAG, V_Z, S_FSRD, S_FSRD + 3, S_FOFF))
    a('s_branch K3_fl_ret')
    if PF:
        a.label('K3_pfwo')
        srd(a, S_QSRD, 6, 7, 1024 * 2048)
        a('s_and_b32 s57, s18, 3')
        a('s_lshl_b32 s58, s%d, 2' % S_W)
        a('s_add_u32 s57, s57, s58')
        a('s_lshl_b32 s57, s57, 17')
        a('s_add_u32 s%d, s57, s%d' % (S_QOFF, S_COL))
        a('s_mov_b32 s%d, 0x1000000' % S_QSTR)
        a('v_lshlrev_b32 v%d, 11, v%d' % (V_PF, V_LANE))
        a('s_branch K3_pfwo_ret')
    a.label('K3_osw')
    if 'oswst' in OPT: a('s_memtime s[84:85]')
    srd(a, S_WSRD, 6, 7, 1024 * 2048)
    a('s_mov_b32 s%d, 0' % S_BOFF)
    a('s_mov_b32 s%d, %d' % (S_AOFF, 112 * 4096))
    a('v_mov_b32 v%d, 0x7fff0000' % V_D1)
    if PF:
        a('s_lshl_b32 s57, s18, 1')
        a('s_and_b32 s58, s%d, 1' % S_W)
        a('s_add_u32 s57, s57, s58')
        a('s_mul_i32 s57, s57, %d' % HO_MG)
        a('s_add_u32 s57, s57, %d' % (WS_HO + 112 * 4096))
        a('s_add_u32 s60, s10, s57')
        a('s_addc_u32 s61, s11, 0')
        srd(a, S_QSRD, 60, 61, 32 * 4096)
        a('s_and_b32 s57, s19, 3')
        a('s_lshl_b32 s57, s57, 1')
        a('s_add_u32 s57, s57, s%d' % S_ROLE)
        a('s_lshr_b32 s58, s%d, 1' % S_W)
        a('s_lshl_b32 s58, s58, 3')
        a('s_add_u32 s57, s57, s58')
        a('s_lshl_b32 s%d, s57, 13' % S_QOFF)
        a('v_lshlrev_b32 v%d, 7, v%d' % (V_PF, V_LANE))
    a('s_waitcnt vmcnt(12)')
    a('v_cmp_eq_u32 vcc, 1, v%d' % V_FLAG)
    a('s_nop 1')
    a('s_cmp_eq_u64 vcc, -1')
    a('s_cbranch_scc0 K3_ospin')
    a('s_branch K3_osw_ret')
    a.label('K3_att')
    att_body(a, stamps)
    return name, kd(name, 256, 256), (512, 256, RING)

def att_body(a, stamps):
    VOFF = 32768
    QA = 144
    Q = [8, 12]
    def KB(b, T): return 16 + 8 * b + 4 * T
    def VB(b, d): return 32 + 8 * b + 4 * d
    def S(par, T, q): return 48 + 16 * par + (q * 2 + T) * 4
    def P(par, q): return 80 + 8 * par + 4 * q
    def O(q, d): return 96 + 12 * q + 4 * d
    ONES, MC, ML, Z, ML1 = 120, 124, 128, 132, 136
    M = [140, 141]; VKA = 142
    def CM(q): return 160 + 4 * q
    def CC(q): return 168 + 4 * q
    def CL(q): return 176 + 4 * q
    VL16 = 1
    NEG = f2u(-1e30)
    a('s_cmp_ge_u32 s2, 512')
    a('s_cbranch_scc1 AT_end')
    a('s_load_dwordx2 s[6:7], s[0:1], %d' % KA_WS)
    a('s_load_dwordx2 s[4:5], s[0:1], %d' % KA_B2)
    if stamps:
        a('s_memrealtime s[90:91]')
        a('s_memtime s[92:93]')
    pr = OV('attprio', 3)
    if OV('attprio0', 3): a('s_setprio %d' % OV('attprio0', 3))
    a('v_lshrrev_b32 v2, 6, v0')
    a('v_and_b32 v3, 63, v0')
    a('v_readfirstlane_b32 s20, v2')
    a('v_lshlrev_b32 v%d, 4, v3' % VL16)
    a('s_and_b32 s21, s2, 7')
    a('s_lshl_b32 s21, s21, 2')
    a('s_bfe_u32 s22, s2, 0x20003')
    a('s_add_u32 s21, s21, s22')
    a('s_bfe_u32 s22, s2, 0x30005')
    a('s_lshl_b32 s23, s21, 17')
    a('s_lshl_b32 s24, s22, 14')
    a('s_add_u32 s23, s23, s24')
    a('s_lshl_b32 s25, s20, 11')
    a('s_add_u32 s25, s25, s23')
    a('s_add_u32 s25, s25, %d' % WS_QK)
    a('s_add_u32 s35, s25, 8192')
    a('s_lshl_b32 s26, s20, 13')
    a('s_add_u32 s27, s23, s26')
    a('s_waitcnt lgkmcnt(0)')
    srd(a, 8, 6, 7, WS_END)
    if 'noatt' in OPT:
        a('s_memtime s[94:95]')
        a('s_branch AT_skip')
    def dmas(base, lo):
        for hf in range(2):
            a('s_add_u32 s28, s27, %d' % (base + hf * 4096))
            a('s_add_u32 m0, s26, %d' % (lo + hf * 4096))
            a('s_nop 0')
            for e in range(4):
                a('buffer_load_dwordx4 v%d, s[8:11], s28 offen offset:%d lds' % (VL16, e * 1024))
    for q in range(2):
        a('buffer_load_dwordx4 v[%d:%d], v%d, s[8:11], s25 offen offset:%d' % (QA + 4 * q, QA + 4 * q + 3, VL16, q * 1024))
    dmas(WS_QK + 4 * MB - 16384, 0)
    dmas(WS_VT - 16384, VOFF)
    for q in range(2):
        a('buffer_load_dwordx4 v[%d:%d], v%d, s[8:11], s35 offen offset:%d' % (QA + 8 + 4 * q, QA + 8 + 4 * q + 3, VL16, q * 1024))
    a('v_and_b32 v4, 15, v3')
    a('v_lshrrev_b32 v5, 4, v3')
    a('v_lshlrev_b32 v5, 2, v5')
    a('v_mov_b32 v6, 0x%x' % NEG)
    for r in range(4):
        a('v_add_u32 v7, %d, v5' % r)
        a('v_cmp_le_u32 vcc, v7, v4')
        a('s_nop 1')
        a('v_cndmask_b32 v%d, v6, 0, vcc' % (MC + r))
        a('v_cndmask_b32 v%d, 0, v6, vcc' % (ML + r))
        a('v_mov_b32 v%d, 0x3f803f80' % (ONES + r))
    a('s_mov_b32 s36, s20')
    a('s_waitcnt vmcnt(10)')
    a('s_barrier')
    a('s_setprio %d' % pr)
    if stamps: a('s_memtime s[94:95]')
    a.label('AT_task')
    a('s_lshl_b32 s31, s36, 11')
    a('v_add_u32 v%d, s31, v%d' % (VKA, VL16))
    def rdK(j, b):
        return ['ds_read_b128 v[%d:%d], v%d offset:%d' % (KB(b, T), KB(b, T) + 3, VKA, (8 - j) * 2048 + T * 1024) for T in range(2)]
    def rdV(j, b):
        return ['ds_read_b128 v[%d:%d], v%d offset:%d' % (VB(b, d), VB(b, d) + 3, VKA, VOFF + (8 - j) * 2048 + d * 1024) for d in range(2)]
    for j in range(3):
        for x in rdK(j, j): a(x)
    for r in range(8):
        a('v_mov_b32 v%d, v%d' % (Q[0] + r, QA + r))
    for r in range(4):
        a('v_mov_b32 v%d, 0' % (Z + r))
        a('v_mov_b32 v%d, v%d' % (ML1 + r, ML + r))
    for q in range(2):
        a('v_mov_b32 v%d, v6' % M[q])
    a('s_add_u32 s30, s36, 1')
    a('s_cmp_eq_u32 s22, 0')
    a('s_cselect_b32 s30, s30, 9')
    def tiles(j):
        t = [(0, 0), (1, 0), (0, 1), (1, 1)]
        if j == 0: t.remove((1, 0))
        if j == 8: t.remove((0, 1))
        return t
    def creg(j, T, q, p2):
        if j == 0 and T == q: return CC(q) if p2 else MC
        if j == 8 and T == q: return CL(q) if p2 else ML1
        return CM(q) if p2 else Z
    def mfS(j, kb, p2):
        r = []
        for (T, q) in tiles(j):
            d = S(j & 1, T, q); c = creg(j, T, q, p2)
            r.append('%s v[%d:%d], v[%d:%d], v[%d:%d], v[%d:%d]' % (MF, d, d + 3, KB(kb, T), KB(kb, T) + 3, Q[q], Q[q] + 3, c, c + 3))
        return r
    def chk(j, p2):
        a('s_cmp_eq_u32 s30, %d' % j)
        a('s_cbranch_scc1 AT_inv%d_%d' % (p2, j))
        a.label('AT_inv%d_%d_ret' % (p2, j))
    def interleave(ms, vs, lead=0):
        n = len(ms)
        if n == 0:
            for x in vs: a(x)
            return
        for g, m in enumerate(ms):
            a(m)
            lo = g * len(vs) // n; hi = (g + 1) * len(vs) // n
            for x in vs[lo:hi]: a(x)
    for j in range(10):
        ms = []
        if j <= 8:
            if j >= 1: chk(j, 0)
            younger = 2 * (min(j + 2, 8) - j)
            a('s_waitcnt lgkmcnt(%d)' % younger)
            ms = mfS(j, j % 4, 0)
        vs = []
        if j >= 1:
            for (T, q) in tiles(j - 1):
                b = S((j - 1) & 1, T, q)
                vs.append('v_max3_f32 v%d, v%d, v%d, v%d' % (M[q], M[q], b, b + 1))
                vs.append('v_max3_f32 v%d, v%d, v%d, v%d' % (M[q], M[q], b + 2, b + 3))
        else:
            vs = ['v_mov_b32 v%d, 0' % (O(0, 0) + r) for r in range(8)]
        if j + 3 <= 8: vs = rdK(j + 3, (j + 3) % 4) + vs
        if j == 9:
            vs = rdK(0, 0) + rdK(1, 1) + ['v_mov_b32 v%d, 0' % (O(0, 0) + r) for r in range(8, 24)] + vs
        interleave(ms, vs)
    for q in range(2):
        a('v_mov_b32 v%d, v%d' % (4 + q, M[q]))
    a('s_nop 0')
    for q in range(2):
        a('v_permlane16_swap_b32 v%d, v%d' % (M[q], 4 + q))
    a('s_nop 0')
    for q in range(2):
        a('v_max_f32 v%d, v%d, v%d' % (M[q], M[q], 4 + q))
    for q in range(2):
        a('v_mov_b32 v%d, v%d' % (4 + q, M[q]))
    a('s_nop 0')
    for q in range(2):
        a('v_permlane32_swap_b32 v%d, v%d' % (M[q], 4 + q))
    a('s_nop 0')
    for q in range(2):
        a('v_max_f32 v%d, v%d, v%d' % (M[q], M[q], 4 + q))
    for q in range(2):
        for r in range(4):
            a('v_sub_f32 v%d, v%d, v%d' % (CC(q) + r, MC + r, M[q]))
        for r in range(4):
            a('v_sub_f32 v%d, 0, v%d' % (CM(q) + r, M[q]))
    a('s_cmp_ge_u32 s36, 4')
    a('s_cbranch_scc1 AT_vok')
    a('s_waitcnt vmcnt(0)')
    a('s_barrier')
    srd(a, 12, 4, 5, 2048)
    a('v_lshlrev_b32 v7, 5, v3')
    a('buffer_load_dword v7, v7, s[12:15], 0 offen')
    a.label('AT_vok')
    a('s_waitcnt lgkmcnt(2)')
    vs = []
    for q in range(2):
        for r in range(4):
            vs.append('v_sub_f32 v%d, v%d, v%d' % (CL(q) + r, ML + r, M[q]))
    vs += ['v_mov_b32 v%d, v%d' % (QA + r, QA + 8 + r) for r in range(8)]
    interleave(mfS(0, 0, 1), vs)
    for j in range(10):
        ms = []
        pre = []
        if j + 2 <= 8: pre += rdK(j + 2, j % 2)
        if j <= 8: pre += rdV(j, j % 2)
        if j + 1 <= 8: chk(j + 1, 1)
        for x in pre: a(x)
        a('s_waitcnt lgkmcnt(%d)' % len(pre))
        if j + 1 <= 8: ms += mfS(j + 1, (j + 1) % 2, 1)
        if j >= 1:
            for q in range(2):
                for d in range(3):
                    o = O(q, d); src = VB((j - 1) % 2, d) if d < 2 else ONES; p = P((j - 1) & 1, q)
                    ms.append('%s v[%d:%d], v[%d:%d], v[%d:%d], v[%d:%d]' % (MF, o, o + 3, src, src + 3, p, p + 3, o, o + 3))
        vs = []
        if j <= 8:
            tl = tiles(j)
            ex = {}
            for (T, q) in tl:
                b = S(j & 1, T, q)
                ex[(T, q)] = ['v_exp_f32 v%d, v%d' % (b + r, b + r) for r in range(4)]
            def cv(T, q):
                p = P(j & 1, q) + 2 * T
                if (T, q) not in tl:
                    return ['v_mov_b32 v%d, 0' % p, 'v_mov_b32 v%d, 0' % (p + 1)]
                b = S(j & 1, T, q)
                return ['v_cvt_pk_bf16_f32 v%d, v%d, v%d' % (p, b, b + 1), 'v_cvt_pk_bf16_f32 v%d, v%d, v%d' % (p + 1, b + 2, b + 3)]
            for (T, q) in tl: vs += ex[(T, q)]
            for q in range(2):
                for T in range(2): vs += cv(T, q)
        if j == 9:
            a('s_nop 0')
        interleave(ms, vs)
    a('s_lshl_b32 s33, s22, 2')
    a('s_lshr_b32 s34, s36, 1')
    a('s_add_u32 s33, s33, s34')
    a('s_mul_i32 s33, s33, %d' % HO_MG)
    a('s_lshl_b32 s34, s21, 12')
    a('s_add_u32 s33, s33, s34')
    a('s_and_b32 s34, s36, 1')
    a('s_lshl_b32 s34, s34, 11')
    a('s_add_u32 s33, s33, s34')
    a('s_add_u32 s33, s33, %d' % (WS_HO + 112 * 4096))
    for q in range(2):
        a('v_rcp_f32 v%d, v%d' % (4 + q, O(q, 2)))
    for q in range(2):
        b = O(q, 0)
        for r in range(8):
            a('v_mul_f32 v%d, v%d, v%d' % (b + r, b + r, 4 + q))
        for r in range(4):
            a('v_cvt_pk_bf16_f32 v%d, v%d, v%d' % (P(0, q) + r, b + 2 * r, b + 2 * r + 1))
        a('buffer_store_dwordx4 v[%d:%d], v%d, s[8:11], s33 offen offset:%d sc1' % (P(0, q), P(0, q) + 3, VL16, q * 1024))
    a('s_add_u32 s36, s36, 4')
    a('s_cmp_lt_u32 s36, 8')
    a('s_cbranch_scc1 AT_task')
    a.label('AT_skip')
    if stamps: a('s_memtime s[96:97]')
    a('s_waitcnt vmcnt(0)')
    a('s_barrier')
    a('s_cmp_lg_u32 s20, 0')
    a('s_cbranch_scc1 AT_fin')
    a('v_mov_b32 v7, 1')
    a('v_mov_b32 v5, 0')
    a('s_lshl_b32 s34, s22, 12')
    a('s_lshl_b32 s33, s21, 2')
    a('s_add_u32 s34, s34, s33')
    a('s_add_u32 s34, s34, %d' % WS_FLAG)
    a('s_mov_b64 exec, 1')
    a('buffer_store_dword v7, v5, s[8:11], s34 offen sc1')
    a('s_mov_b64 exec, -1')
    a.label('AT_fin')
    if stamps:
        a('s_mov_b32 s10, s6'); a('s_mov_b32 s11, s7')
        emit_stamps(a, 20, 10, 65 * MB, 24)
    a.label('AT_end')
    a('s_endpgm')
    for p2 in range(2):
        for j in range(1, 9):
            a.label('AT_inv%d_%d' % (p2, j))
            a('s_nop 3')
            regs = ([Z, ML1] if not p2 else [CM(0), CM(1), CL(0), CL(1)])
            for b in regs:
                for r in range(4): a('v_mov_b32 v%d, v6' % (b + r))
            a('s_branch AT_inv%d_%d_ret' % (p2, j))

def gen_probe(a):
    name = 'probe_kernel'
    kernel_begin(a, name)
    a('s_cmp_ge_u32 s2, 256')
    a('s_cbranch_scc1 PR_end')
    a('s_load_dwordx2 s[4:5], s[0:1], %d' % KA_W2)
    a('s_load_dwordx2 s[6:7], s[0:1], %d' % KA_WO)
    a('s_load_dwordx2 s[10:11], s[0:1], %d' % KA_WS)
    a('s_load_dwordx2 s[12:13], s[0:1], %d' % KA_X)
    a('s_load_dwordx2 s[14:15], s[0:1], %d' % KA_BX)
    a('v_lshlrev_b32 v1, 4, v0')
    a('s_waitcnt lgkmcnt(0)')
    srd(a, 20, 4, 5, 7 * MB); srd(a, 24, 6, 7, 2 * MB); srd(a, 28, 10, 11, 200 * MB); srd(a, 32, 12, 13, 4 * MB); srd(a, 36, 14, 15, 4 * MB)
    a('s_and_b32 s40, s2, 7'); a('s_lshr_b32 s41, s2, 3')
    regs = []
    def probe(idx, srdb, offexpr):
        for l in offexpr: a(l)
        for rep in range(2):
            a('s_memtime s[50:51]'); a('s_waitcnt lgkmcnt(0)')
            a('buffer_load_dwordx4 v[4:7], v1, s[%d:%d], s44 offen offset:%d' % (srdb, srdb + 3, rep * 2048))
            a('s_waitcnt vmcnt(0)')
            a('s_memtime s[52:53]'); a('s_waitcnt lgkmcnt(0)')
            a('s_sub_u32 s52, s52, s50')
            a('v_mov_b32 v%d, s52' % (10 + 2 * idx + rep))
    probe(0, 28, ['s_mul_i32 s44, s2, 57344', 's_and_b32 s45, s2, 3', 's_lshr_b32 s44, s2, 3', 's_mul_i32 s44, s44, %d' % HO_MG, 's_lshl_b32 s45, s40, 15', 's_add_u32 s44, s44, s45', 's_add_u32 s44, s44, %d' % WS_HO])
    probe(1, 28, ['s_lshl_b32 s44, s40, 19', 's_lshl_b32 s45, s41, 13', 's_add_u32 s44, s44, s45', 's_add_u32 s44, s44, %d' % (WS_QK + 4 * MB)])
    probe(2, 28, ['s_xor_b32 s44, s40, 3', 's_lshl_b32 s44, s44, 19', 's_lshl_b32 s45, s41, 13', 's_add_u32 s44, s44, s45', 's_add_u32 s44, s44, %d' % (WS_VT + 4096)])
    probe(3, 20, ['s_mul_i32 s44, s2, 28672'])
    probe(4, 24, ['s_lshl_b32 s44, s2, 13'])
    probe(5, 32, ['s_lshl_b32 s44, s2, 14'])
    probe(6, 36, ['s_lshl_b32 s44, s2, 14'])
    probe(7, 28, ['s_lshl_b32 s44, s2, 15', 's_add_u32 s44, s44, %d' % WS_P])
    a('s_lshl_b32 s44, s2, 6')
    a('s_add_u32 s44, s44, %d' % (66 * MB))
    a('v_mov_b32 v2, 0')
    for q in range(4):
        a('buffer_store_dwordx4 v[%d:%d], v2, s[28:31], s44 offen offset:%d' % (10 + 4 * q, 13 + 4 * q, 16 * q))
    a.label('PR_end')
    a('s_endpgm')
    return name, kd(name, 64, 64), (256, 64, 0)

def gen_empty(a):
    name = 'empty_kernel'
    kernel_begin(a, name)
    a('s_endpgm')
    return name, kd(name, 32, 32), (256, 256, 0)

HEADER = open('recurrent_scan__sliding_block__dense_activation_squared_relu__prompt.s.ref').read().split('; Override')[0]

def build(kernels, stamps=False):
    a = Asm()
    infos = []
    for g in kernels:
        infos.append(g(a))
    out = HEADER
    for name, k, (gx, bx, lds) in infos:
        out += '; @launch kernel=%s grid=(%d,1,1) block=(%d,1,1) lds=%d\n' % (name, gx, bx, lds)
    out += '.amdgcn_target "amdgcn-amd-amdhsa--gfx950"\n.text\n'
    out += a.text()
    out += '.section .rodata,"a"\n'
    for name, k, _ in infos:
        out += k
    return out

if __name__ == '__main__':
    stamps = '--stamps' in sys.argv
    outp = [x for x in sys.argv[1:] if not x.startswith('--')][0]
    ks = [gen_ln, lambda a: gen_gemm1(a, stamps), gen_att, lambda a: gen_gemm2(a, stamps)]
    if 'v1' not in OPT:
        ks = [gen_ln, lambda a: gen_gemm1(a, stamps), lambda a: gen_k3(a, stamps)]
    if 'probe' in OPT:
        ks = [gen_ln, lambda a: gen_gemm1(a, stamps), gen_probe]
    if 'emptyfirst' in OPT: ks = [gen_empty] + ks
    if 'emptylast' in OPT: ks = ks + [gen_empty]
    open(outp, 'w').write(build(ks))
```

```python
import sys
sys.path.insert(0, 'dev')
from asmlib import *

OPT = set(x[2:] for x in sys.argv if x.startswith('--'))
def FL(key):
    for o in OPT:
        if o.startswith(key + '='): return ' ' + o.split('=')[1].replace('+', ' ')
    return ''
def OV(key, default):
    for o in OPT:
        if o.startswith(key + '='): return int(o.split('=')[1])
    return default
MB = 1 << 20
WS_XN = 0
WS_QK = 4 * MB
WS_VT = 12 * MB
WS_HO = 16 * MB
HO_MG = 144 * 4096
WS_SIZE = 268435456
QSCALE = 0x3e8293ee
import struct, math
def f2u(f): return struct.unpack('<I', struct.pack('<f', f))[0]
QSCALE = f2u(math.log2(math.e) / math.sqrt(32.0))

KA_X, KA_WQKV, KA_WO, KA_BX, KA_W1, KA_B1, KA_W2, KA_B2, KA_OUT, KA_DBG, KA_WS = [8 * i for i in range(11)]

def xlane_sum_g(a, v, t):
    a('v_mov_b32 v%d, v%d' % (t, v))
    a('s_nop 1')
    a('v_permlane16_swap_b32 v%d, v%d' % (v, t))
    a('s_nop 1')
    a('v_add_f32 v%d, v%d, v%d' % (v, v, t))
    a('v_mov_b32 v%d, v%d' % (t, v))
    a('s_nop 1')
    a('v_permlane32_swap_b32 v%d, v%d' % (v, t))
    a('s_nop 1')
    a('v_add_f32 v%d, v%d, v%d' % (v, v, t))

def bf16r(a, v):
    a('v_cvt_pk_bf16_f32 v%d, v%d, v%d' % (v, v, v))
    a('v_lshlrev_b32 v%d, 16, v%d' % (v, v))

_cp = [0]
def code_pf(a, start, end, vtmp, vlane, stmp, first_line=None, n=1):
    _cp[0] += 1
    l = 'CP%d' % _cp[0]
    r = ['s_getpc_b64 s[%d:%d]' % (stmp, stmp + 1)]
    r.append(('L', l))
    r.append('s_add_u32 s%d, s%d, %s-%s' % (stmp, stmp, start, l))
    r.append('s_addc_u32 s%d, s%d, (%s-%s)>>32' % (stmp + 1, stmp + 1, start, l))
    r.append('v_lshlrev_b32 v%d, 7, v%d' % (vtmp, vlane))
    if first_line is not None:
        r.append('v_lshl_add_u32 v%d, s%d, 13, v%d' % (vtmp, first_line, vtmp))
    for i in range(n):
        r.append('v_min_u32 v%d, %s-%s-4, v%d' % (vtmp + 1, end, start, vtmp))
        r.append('global_load_dword v%d, v%d, s[%d:%d]' % (vtmp + 1, vtmp + 1, stmp, stmp + 1))
        if i + 1 < n: r.append('v_add_u32 v%d, 8192, v%d' % (vtmp, vtmp))
    for x in r:
        if isinstance(x, tuple): a.label(x[1])
        else: a(x)

def gen_ln(a):
    name = 'ln_kernel'
    kernel_begin(a, name)
    PFR = OV('pfr', 256)
    a('s_cmp_ge_u32 s2, 128')
    a('s_cbranch_scc1 LN_pf')
    a('s_load_dwordx2 s[4:5], s[0:1], %d' % KA_X)
    a('s_load_dwordx2 s[6:7], s[0:1], %d' % KA_WS)
    a('v_and_b32 v1, 15, v0')
    a('v_bfe_u32 v2, v0, 4, 2')
    a('v_lshrrev_b32 v3, 6, v0')
    a('v_lshlrev_b32 v4, 11, v1')
    a('v_lshl_add_u32 v4, v2, 4, v4')
    a('v_lshl_add_u32 v4, v3, 8, v4')
    a('s_lshl_b32 s3, s2, 15')
    a('s_waitcnt lgkmcnt(0)')
    srd(a, 8, 4, 5, 2048 * 1024 * 2)
    srd(a, 12, 6, 7, 45 * MB)
    for e in range(4):
        a('buffer_load_dwordx4 v[%d:%d], v4, s[8:11], s3 offen offset:%d' % (8 + 4 * e, 11 + 4 * e, e * 64))
    a('v_and_b32 v5, 63, v0')
    a('v_lshlrev_b32 v5, 4, v5')
    a('v_lshl_add_u32 v5, v3, 14, v5')
    a('s_lshr_b32 s16, s2, 2')
    a('s_lshl_b32 s16, s16, 17')
    a('s_and_b32 s17, s2, 3')
    a('s_lshl_b32 s17, s17, 10')
    a('s_add_u32 s16, s16, s17')
    a('v_mov_b32 v6, 0')
    a('v_and_b32 v7, 31, v0')
    a('v_lshlrev_b32 v7, 2, v7')
    a('s_lshl_b32 s18, s2, 9')
    a('s_add_u32 s18, s18, %d' % (44 * MB + 65536))
    a('s_and_b32 s19, s2, 7')
    a('s_lshl_b32 s19, s19, 12')
    a('s_add_u32 s19, s19, %d' % (44 * MB))
    a('v_cmp_gt_u32 vcc, 32, v0')
    a('s_and_saveexec_b64 s[20:21], vcc')
    a('s_cbranch_execz LN_noz')
    a('buffer_store_dword v6, v7, s[12:15], s18 offen')
    a('buffer_store_dword v6, v7, s[12:15], s18 offen offset:256')
    a('buffer_store_dword v6, v7, s[12:15], s19 offen')
    a.label('LN_noz')
    a('s_mov_b64 exec, s[20:21]')
    a('s_waitcnt vmcnt(0)')
    for d in range(16):
        a('v_lshlrev_b32 v%d, 16, v%d' % (32 + 2 * d, 8 + d))
        a('v_and_b32 v%d, 0xffff0000, v%d' % (33 + 2 * d, 8 + d))
    a('v_pk_add_f32 v[24:25], v[32:33], v[34:35]')
    a('v_pk_add_f32 v[26:27], v[36:37], v[38:39]')
    for d in range(2, 8):
        a('v_pk_add_f32 v[24:25], v[24:25], v[%d:%d]' % (32 + 4 * d, 33 + 4 * d))
        a('v_pk_add_f32 v[26:27], v[26:27], v[%d:%d]' % (34 + 4 * d, 35 + 4 * d))
    a('v_pk_add_f32 v[24:25], v[24:25], v[26:27]')
    a('v_add_f32 v24, v24, v25')
    xlane_sum_g(a, 24, 25)
    a('v_mul_f32 v24, 0x%x, v24' % f2u(1.0 / 128))
    a('v_mov_b32 v25, v24')
    a('v_mov_b32 v26, 0')
    a('v_mov_b32 v27, 0')
    for d in range(16):
        a('v_pk_add_f32 v[28:29], v[%d:%d], v[24:25] neg_lo:[0,1] neg_hi:[0,1]' % (32 + 2 * d, 33 + 2 * d))
        a('v_pk_fma_f32 v[26:27], v[28:29], v[28:29], v[26:27]')
    a('v_add_f32 v25, v26, v27')
    xlane_sum_g(a, 25, 26)
    a('v_lshlrev_b32 v6, 3, v1')
    a('v_lshl_add_u32 v7, v3, 7, v6')
    a('ds_write_b64 v7, v[24:25]')
    a('s_waitcnt lgkmcnt(0)')
    a('s_barrier')
    for w in range(8):
        a('ds_read_b64 v[%d:%d], v6 offset:%d' % (8 + 2 * w, 9 + 2 * w, w * 128))
    a('s_waitcnt lgkmcnt(0)')
    a('v_add_f32 v24, v8, v10')
    a('v_add_f32 v25, v9, v11')
    for w in range(2, 8):
        a('v_add_f32 v24, v24, v%d' % (8 + 2 * w))
        a('v_add_f32 v25, v25, v%d' % (9 + 2 * w))
    a('v_mul_f32 v24, 0.125, v24' if False else 'v_mul_f32 v24, 0x3e000000, v24')
    a('v_mov_b32 v26, 0')
    for w in range(8):
        a('v_sub_f32 v27, v%d, v24' % (8 + 2 * w))
        a('v_fmac_f32 v26, v27, v27')
    a('v_mov_b32 v27, 0x43000000')
    a('v_fmac_f32 v25, v26, v27')
    a('v_mul_f32 v25, 0x%x, v25' % f2u(1.0 / 1024))
    bf16r(a, 24)
    bf16r(a, 25)
    a('v_add_f32 v25, 0x%x, v25' % f2u(1e-5))
    bf16r(a, 25)
    a('v_sqrt_f32 v25, v25')
    a('s_nop 0')
    bf16r(a, 25)
    a('v_rcp_f32 v26, v25')
    a('v_mov_b32 v25, v24')
    a('v_mov_b32 v27, v26')
    for d in range(16):
        x0 = 32 + 2 * d
        a('v_pk_add_f32 v[%d:%d], v[%d:%d], v[24:25] neg_lo:[0,1] neg_hi:[0,1]' % (x0, x0 + 1, x0, x0 + 1))
        a('v_cvt_pk_bf16_f32 v28, v%d, v%d' % (x0, x0 + 1))
        a('v_lshlrev_b32 v%d, 16, v28' % x0)
        a('v_and_b32 v%d, 0xffff0000, v28' % (x0 + 1))
        a('v_pk_mul_f32 v[%d:%d], v[%d:%d], v[26:27]' % (x0, x0 + 1, x0, x0 + 1))
        a('v_cvt_pk_bf16_f32 v%d, v%d, v%d' % (8 + d, x0, x0 + 1))
    for e in range(4):
        a('s_add_u32 s17, s16, %d' % (e * 4096))
        a('buffer_store_dwordx4 v[%d:%d], v5, s[12:15], s17 offen' % (8 + 4 * e, 11 + 4 * e))
    a.label('LN_end')
    a('s_endpgm')
    a.label('LN_pf')
    if PFR:
        a('s_cmp_ge_u32 s2, 256')
        a('s_cbranch_scc1 LN_end')
        a('s_load_dwordx2 s[4:5], s[0:1], %d' % KA_WQKV)
        a('s_load_dwordx2 s[6:7], s[0:1], %d' % KA_W1)
        a('s_load_dwordx2 s[16:17], s[0:1], %d' % KA_B1)
        a('v_lshrrev_b32 v1, 6, v0')
        a('v_and_b32 v2, 63, v0')
        a('v_readfirstlane_b32 s20, v1')
        if 'nocp' not in OPT:
            a('s_cmp_lt_u32 s2, 248')
            a('s_cbranch_scc1 LN_nocp')
            code_pf(a, 'gemm1_kernel', 'G1_end', 10, 2, 30, first_line=20)
            a.label('LN_nocp')
        a('s_and_b32 s21, s2, 7')
        a('s_lshr_b32 s22, s2, 3')
        a('s_and_b32 s22, s22, 15')
        a('s_lshl_b32 s22, s22, 2')
        a('s_lshr_b32 s23, s20, 1')
        a('s_add_u32 s22, s22, s23')
        if PFR < 512:
            a('s_cmp_ge_u32 s22, %d' % (PFR // 8))
            a('s_cbranch_scc1 LN_end')
        a('v_lshrrev_b32 v3, 3, v2')
        a('v_and_b32 v4, 7, v2')
        a('s_lshl_b32 s24, s22, 3')
        a('v_add_u32 v3, s24, v3')
        a('s_and_b32 s25, s20, 1')
        a('s_cmp_eq_u32 s25, 1')
        a('s_cbranch_scc1 LN_pf_w1')
        a('s_mov_b32 s26, 6144')
        a('v_mul_lo_u32 v3, v3, s26')
        a('v_min_u32 v4, 5, v4')
        a('s_lshl_b32 s27, s21, 8')
        a('v_lshrrev_b32 v5, 1, v4')
        a('v_lshl_add_u32 v3, v5, 11, v3')
        a('v_and_b32 v6, 1, v4')
        a('v_lshl_add_u32 v3, v6, 7, v3')
        a('v_add_u32 v3, s27, v3')
        a('s_waitcnt lgkmcnt(0)')
        srd(a, 8, 4, 5, 1024 * 6144)
        for e in range(max(1, PFR // 512)):
            a('s_mov_b32 s28, %d' % (e * 512 * 6144))
            a('buffer_load_dword v%d, v3, s[8:11], s28 offen%s' % (8 + e, FL('pff')))
        a('s_endpgm')
        a.label('LN_pf_w1')
        a('s_mov_b32 s26, 7168')
        a('v_mul_lo_u32 v3, v3, s26')
        a('v_min_u32 v4, 6, v4')
        a('s_mul_i32 s27, s21, 896')
        a('v_lshl_add_u32 v3, v4, 7, v3')
        a('v_add_u32 v3, s27, v3')
        a('s_waitcnt lgkmcnt(0)')
        srd(a, 8, 6, 7, 1024 * 7168)
        srd(a, 12, 16, 17, 7168)
        a('v_lshlrev_b32 v5, 7, v4')
        a('buffer_load_dword v7, v5, s[12:15], s27 offen')
        for e in range(max(1, PFR // 512)):
            a('s_mov_b32 s28, %d' % (e * 512 * 7168))
            a('buffer_load_dword v%d, v3, s[8:11], s28 offen%s' % (8 + e, FL('pff')))
    a('s_endpgm')
    return name, kd(name, 64, 64), (256 if PFR else 128, 512, 1024)

def gen_gemm1(a, stamps=False):
    name = 'gemm1_kernel'
    NS = OV('ns1', 4); DA = OV('da1', 4)
    kernel_begin(a, name)
    a('s_cmp_ge_u32 s2, 256')
    a('s_cbranch_scc1 G1_end')
    a('s_load_dwordx2 s[4:5], s[0:1], %d' % KA_WQKV)
    a('s_load_dwordx2 s[6:7], s[0:1], %d' % KA_W1)
    a('s_load_dwordx2 s[8:9], s[0:1], %d' % KA_B1)
    a('s_load_dwordx2 s[10:11], s[0:1], %d' % KA_WS)
    a('s_load_dwordx2 s[78:79], s[0:1], %d' % KA_W2)
    a('s_load_dwordx2 s[80:81], s[0:1], %d' % KA_WO)
    if stamps:
        a('s_memrealtime s[90:91]')
        a('s_memtime s[92:93]')
    a('v_mov_b32 v255, v0')
    a('v_lshrrev_b32 v254, 6, v0')
    a('s_nop 0')
    a('v_readfirstlane_b32 s40, v254')
    a('v_and_b32 v253, 63, v255')
    a('s_and_b32 s41, s2, 7')
    a('s_lshr_b32 s42, s2, 3')
    a('s_and_b32 s43, s42, 7')
    a('s_lshr_b32 s44, s42, 3')
    a('s_and_b32 s45, s44, 1')
    a('s_lshl_b32 s41, s41, 1')
    a('s_add_u32 s45, s45, s41')
    a('s_lshl_b32 s46, s43, 2')
    a('s_add_u32 s46, s46, s40')
    a('s_cmp_ge_u32 s44, 2')
    a('s_cbranch_scc1 G1_w1')
    gemm1_variant(a, 'qkv', NS, DA, stamps)
    a.label('G1_w1')
    gemm1_variant(a, 'w1', NS, DA, stamps)
    a.label('G1_end')
    a('s_endpgm')
    return name, kd(name, 512, 256), (256, 256, NS * 28672)

def gemm1_variant(a, var, NS, DA, stamps):
    MFM = 'v_mfma_f32_16x16x32_bf16'
    isw1 = var == 'w1'
    NT = 14 if isw1 else 12
    LD = 7168 if isw1 else 6144
    SLAB = 7168 if isw1 else 6144
    STAGE = 4 * SLAB
    ND = 7 if isw1 else 6
    L = 'G1%s_' % var
    SF = FL('s1w' if isw1 else 's1q')
    PFL2 = (not isw1) and 'nopf2' not in OPT and 'pf2end' not in OPT
    V_RD = 224
    V_DE, V_DO, V_DS = 230, 231, 232
    V_A = 233
    T0, T1, T2, T3 = 234, 235, 236, 237
    V_LANE = 253
    def bfrag(t): return 4 * t
    def afrag(slot, i): return 64 + 16 * slot + 4 * i
    XB = 64 + 16 * DA
    def swapped(t): return isw1 or t < 8
    def acc(i, t):
        if swapped(t):
            return (i * NT + t) * 4 if isw1 else (i * 8 + t) * 4
        return 128 + ((t - 8) * 4 + i) * 4
    S_WSRD, S_ASRD, S_OSRD, S_BSRD = 12, 16, 20, 24
    S_W, S_J, S_MG = 40, 45, 46
    S_BOFF, S_BOFF2, S_AOFF, S_T, S_RDELTA, S_RPOS, S_CNT = 50, 51, 52, 53, 54, 55, 56
    S_SCALE = 58
    S_ST = 28
    a.c('--- variant %s' % var)
    a('v_lshrrev_b32 v%d, 3, v%d' % (T0, V_LANE))
    a('s_lshr_b32 s60, s%d, 1' % S_W)
    a('v_and_b32 v%d, 6, v%d' % (T1, T0))
    a('s_lshl_b32 s60, s60, 5')
    a('v_and_b32 v%d, 7, v%d' % (T2, V_LANE))
    a('s_and_b32 s61, s%d, 1' % S_W)
    a('v_xor_b32 v%d, v%d, v%d' % (T1, T1, T2))
    a('s_lshl_b32 s61, s61, 2')
    a('v_lshrrev_b32 v%d, 2, v%d' % (T2, T0))
    a('s_add_u32 s60, s60, s61')
    a('v_and_b32 v%d, 3, v%d' % (T0, T0))
    a('s_mov_b32 s61, %d' % LD)
    a('v_lshl_add_u32 v%d, v%d, 3, v%d' % (T0, T2, T0))
    a('v_add_u32 v%d, s60, v%d' % (T0, T0))
    a('v_mul_lo_u32 v%d, v%d, s61' % (T0, T0))
    a('v_lshl_add_u32 v%d, v%d, 4, v%d' % (V_DE, T1, T0))
    if isw1:
        a('s_and_b32 s62, s%d, 1' % S_J)
        a('s_lshl_b32 s63, s62, 6')
        a('s_xor_b32 s62, s62, 1')
        a('s_mul_i32 s62, s62, 384')
        a('v_add_u32 v%d, s63, v%d' % (V_DE, V_DE))
        a('v_lshrrev_b32 v%d, 4, v%d' % (T0, V_LANE))
        a('v_and_b32 v%d, 1, v%d' % (T1, T0))
        a('v_lshlrev_b32 v%d, 1, v%d' % (T1, T1))
        a('v_and_b32 v%d, 3, v%d' % (T2, V_LANE))
        a('v_xor_b32 v%d, v%d, v%d' % (T1, T1, T2))
        a('v_bfe_u32 v%d, v%d, 2, 2' % (T2, V_LANE))
        a('v_lshl_add_u32 v%d, v%d, 3, v%d' % (T0, T0, T2))
        a('v_add_u32 v%d, s60, v%d' % (T0, T0))
        a('v_mul_lo_u32 v%d, v%d, s61' % (T0, T0))
        a('v_lshl_add_u32 v%d, v%d, 4, v%d' % (V_DS, T1, T0))
        a('v_add_u32 v%d, s62, v%d' % (V_DS, V_DS))
    a('v_add_u32 v%d, %d, v%d' % (V_DO, 16 * LD, V_DE))
    a('v_lshlrev_b32 v%d, 4, v%d' % (V_A, V_LANE))
    if isw1:
        a('s_mul_i32 s%d, s%d, 448' % (S_BOFF, S_J))
        a('s_add_u32 s64, s%d, s63' % S_BOFF)
        a('s_add_u32 s65, s%d, s62' % S_BOFF)
    else:
        a('s_lshl_b32 s%d, s%d, 7' % (S_BOFF, S_J))
        a('s_add_u32 s%d, s%d, 4096' % (S_BOFF2, S_BOFF))
    a('s_mov_b32 s%d, 0' % S_AOFF)
    a('s_mul_i32 s%d, s%d, %d' % (S_T, S_W, SLAB))
    if isw1:
        a('s_sub_u32 s65, s65, 384')
        a('v_mov_b32 v%d, s64' % T1)
        a('v_mov_b32 v%d, s65' % T2)
        a('v_cmp_gt_u32 vcc, 48, v%d' % V_LANE)
        a('s_nop 1')
        a('v_cndmask_b32 v%d, v%d, v%d, vcc' % (T1, T2, T1))
        a('v_lshl_add_u32 v%d, v%d, 3, v%d' % (T3, V_LANE, T1))
    a('s_waitcnt lgkmcnt(0)')
    if isw1:
        srd(a, S_BSRD, 8, 9, 3584 * 2)
        a('buffer_load_dwordx2 v[238:239], v%d, s[%d:%d], 0 offen' % (T3, S_BSRD, S_BSRD + 3))
        srd(a, S_WSRD, 6, 7, 1024 * LD)
    else:
        srd(a, S_WSRD, 4, 5, 1024 * LD)

    if isw1:
        pieces = [(V_DE, S_BOFF, 0, 0), (V_DO, S_BOFF, 0, 1024), (V_DE, S_BOFF, 128, 2048), (V_DO, S_BOFF, 128, 3072),
                  (V_DE, S_BOFF, 256, 4096), (V_DO, S_BOFF, 256, 5120), (V_DS, S_BOFF, 0, 6144)]
    else:
        pieces = [(V_DE, S_BOFF, 0, 0), (V_DO, S_BOFF, 0, 1024), (V_DE, S_BOFF, 2048, 2048), (V_DO, S_BOFF, 2048, 3072),
                  (V_DE, S_BOFF2, 0, 4096), (V_DO, S_BOFF2, 0, 5120)]
    n_first = (ND + 1) // 2
    def m0_set(p):
        v, s, imm, lo = pieces[p]
        return 's_add_u32 m0, s%d, %d' % (S_T, lo - imm)
    def dma(p):
        v, s, imm, lo = pieces[p]
        return 'buffer_load_dwordx4 v%d, s[%d:%d], s%d offen offset:%d%s lds' % (v, S_WSRD, S_WSRD + 3, s, imm, FL('w1f'))
    def aload(slot, i):
        b = afrag(slot, i)
        return 'buffer_load_dwordx4 a[%d:%d], v%d, s[%d:%d], s%d offen offset:%d%s' % (b, b + 3, V_A, S_ASRD, S_ASRD + 3, S_AOFF, i * 1024, FL('a1f'))
    def adv_a():
        return ['s_add_u32 s%d, s%d, 4096' % (S_AOFF, S_AOFF)]
    def adv_dma():
        r = ['s_add_u32 s%d, s%d, %d' % (S_BOFF, S_BOFF, 64 * LD)]
        if not isw1:
            r.append('s_add_u32 s%d, s%d, %d' % (S_BOFF2, S_BOFF2, 64 * LD))
        r += ['s_add_u32 s%d, s%d, %d' % (S_T, S_T, STAGE),
              's_cmp_ge_u32 s%d, %d' % (S_T, NS * STAGE),
              's_cselect_b32 s60, %d, 0' % (NS * STAGE),
              's_sub_u32 s%d, s%d, s60' % (S_T, S_T)]
        return r
    def rd(t, s, q, dst=None):
        b = (bfrag(t) if dst is None else dst) + 2 * s
        if t < 12:
            v = V_RD + (t & 3); off = (t >> 2) * 2048
        else:
            v = V_RD + 4 + (t - 12); off = 0
        off += (2 * q + s) * SLAB
        return 'ds_read_b64_tr_b16 a[%d:%d], v%d offset:%d' % (b, b + 1, v, off)
    def mfma(i, t, W, X, first=False):
        c = acc(i, t)
        if not swapped(t): W, X = X, W
        cs = 'v[%d:%d]' % (c, c + 3)
        if first:
            cs = ('v[%d:%d]' % (acc(3, t), acc(3, t) + 3)) if isw1 else '0'
        return '%s v[%d:%d], a[%d:%d], a[%d:%d], %s' % (MFM, c, c + 3, W, W + 3, X, X + 3, cs)
    LA = DA - 1; DS = NS - 2
    def step_ops(v):
        ops = []
        if v + LA >= 0: ops += [('A', v + LA)] * 4
        if v >= 1 and v % 4 == 1: ops += [('X', v)] * NX
        st = (v + 1) // 2 + DS
        if st >= 0: ops += [('D', st)] * (n_first if v % 2 else ND - n_first)
        return ops
    NX = (2 if PFL2 else 0) + (1 if 'nopf1' not in OPT else 0)
    V0 = -max(LA, 2 * DS + 1)
    def need_cnt(k):
        seq = []
        for v in range(V0, k): seq += step_ops(v)
        need = set()
        if k >= 0: need.add(('A', k))
        if k % 2: need.add(('D', (k + 1) // 2))
        last = max(i for i, o in enumerate(seq) if o in need)
        return len(seq) - 1 - last
    def vstep_list(vs):
        r = []
        if vs + LA >= 0:
            for i in range(4):
                r.append([aload((vs + LA) % DA, i)] + (adv_a() if i == 3 else []))
        odd = vs % 2 != 0
        if (vs + 1) // 2 + DS >= 0:
            ps = list(range(0, n_first) if odd else range(n_first, ND))
            for p in ps:
                r.append([m0_set(p), 's_nop 0', dma(p)] + (adv_dma() if (not odd and p == ps[-1]) else []))
        return r
    if stamps: a('s_memtime s[70:71]')
    pro = []
    for vs in range(V0, -1): pro += vstep_list(vs)
    seq = []
    for v in range(V0, -1): seq += step_ops(v)
    nb1 = max(i for i, o in enumerate(seq) if o in (('A', 0), ('D', 0))) + 1
    did_asrd = False
    def asrd():
        a('s_lshl_b32 s61, s%d, 17' % S_MG)
        a('s_add_u32 s62, s10, s61')
        a('s_addc_u32 s63, s11, 0')
        srd(a, S_ASRD, 62, 63, 131072)
    for n in range(nb1):
        if seq[n][0] == 'A' and not did_asrd:
            asrd(); did_asrd = True
        for x in pro[n]: a(x)
    srd(a, S_OSRD, 10, 11, 34 * MB)
    a('v_lshrrev_b32 v%d, 4, v%d' % (T0, V_LANE))
    a('v_bfe_u32 v%d, v%d, 2, 2' % (T1, V_LANE))
    a('v_and_b32 v%d, 1, v%d' % (T2, T0))
    a('v_lshl_add_u32 v%d, v%d, 2, v%d' % (T2, T2, T1))
    a('v_and_b32 v%d, 6, v%d' % (T3, T2))
    a('v_bfe_u32 v%d, v%d, 1, 1' % (T1, V_LANE))
    a('v_or_b32 v%d, v%d, v%d' % (T3, T3, T1))
    a('v_lshrrev_b32 v%d, 1, v%d' % (T0, T0))
    a('v_lshlrev_b32 v%d, 10, v%d' % (T0, T0))
    a('v_lshl_add_u32 v%d, v%d, 7, v%d' % (T0, T2, T0))
    a('v_and_b32 v%d, 1, v%d' % (T1, V_LANE))
    a('v_lshl_add_u32 v%d, v%d, 3, v%d' % (T0, T1, T0))
    for b in range(4):
        a('v_xor_b32 v%d, %d, v%d' % (T1, 2 * b, T3))
        a('v_lshl_add_u32 v%d, v%d, 4, v%d' % (V_RD + b, T1, T0))
    if isw1:
        a('v_lshrrev_b32 v%d, 2, v%d' % (T0, V_LANE))
        a('v_lshlrev_b32 v%d, 6, v%d' % (T0, T0))
        a('v_and_b32 v%d, 1, v%d' % (T1, V_LANE))
        a('v_lshl_add_u32 v%d, v%d, 3, v%d' % (T0, T1, T0))
        a('v_add_u32 v%d, 6144, v%d' % (T0, T0))
        a('v_bfe_u32 v%d, v%d, 4, 1' % (T1, V_LANE))
        a('v_lshlrev_b32 v%d, 1, v%d' % (T1, T1))
        a('v_bfe_u32 v%d, v%d, 1, 1' % (T2, V_LANE))
        a('v_or_b32 v%d, v%d, v%d' % (T1, T1, T2))
        for b in range(2):
            a('v_xor_b32 v%d, %d, v%d' % (T2, 2 * b, T1))
            a('v_lshl_add_u32 v%d, v%d, 4, v%d' % (V_RD + 4 + b, T2, T0))
    if isw1:
        a('s_mul_i32 s60, s%d, %d' % (S_MG, HO_MG))
        a('s_add_u32 s60, s60, %d' % WS_HO)
        a('s_mul_i32 s61, s%d, %d' % (S_J, 7 * 4096))
        a('s_add_u32 s60, s60, s61')
        a('s_and_b32 s62, s%d, 1' % S_J)
        a('s_lshl_b32 s63, s62, 12')
        a('s_add_u32 s%d, s60, s63' % S_ST)
        for p in range(1, 6):
            a('s_add_u32 s%d, s%d, %d' % (S_ST + p, S_ST, p * 4096))
        a('s_xor_b32 s62, s62, 1')
        a('s_mul_i32 s62, s62, %d' % (6 * 4096))
        a('s_add_u32 s%d, s60, s62' % (S_ST + 6))
    else:
        a('s_lshl_b32 s60, s%d, 18' % S_J)
        a('s_lshl_b32 s61, s%d, 12' % S_MG)
        a('s_add_u32 s60, s60, s61')
        for p in range(6):
            a('s_add_u32 s%d, s60, %d' % (S_ST + p, WS_QK + (p >> 1) * 4 * MB + (p & 1) * 131072))
        a('s_mov_b32 s%d, 0x%x' % (S_SCALE, QSCALE))
        if PFL2:
            srd(a, S_BSRD, 78, 79, 3584 * 2048)
            srd(a, 84, 80, 81, 1024 * 2048)
            a('s_lshl_b32 s82, s%d, 5' % S_J)
            a('s_add_u32 s82, s82, s%d' % S_MG)
            a('s_lshl_b32 s83, s82, 10')
            a('s_lshl_b32 s82, s82, 11')
            a('v_and_b32 v240, 15, v%d' % V_LANE)
            a('v_lshlrev_b32 v240, 7, v240')
            a('v_and_b32 v241, 0x380, v240')
    PF1 = 'nopf1' not in OPT
    if PF1:
        a('v_and_b32 v244, 3, v%d' % V_LANE)
        a('s_lshl_b32 s60, s%d, 2' % S_MG)
        a('v_add_u32 v244, s60, v244')
        a('s_mov_b32 s61, %d' % LD)
        a('v_mul_lo_u32 v244, v244, s61')
        a('v_bfe_u32 v245, v%d, 2, 2' % V_LANE)
        if isw1:
            a('v_lshl_add_u32 v244, v245, 7, v244')
            a('s_mul_i32 s68, s%d, 448' % S_J)
            a('s_and_b32 s68, s68, 0xffffff80')
        else:
            a('v_min_u32 v245, 2, v245')
            a('v_lshl_add_u32 v244, v245, 11, v244')
            a('s_lshl_b32 s68, s%d, 7' % S_J)
        a('s_add_u32 s68, s68, %d' % (OV('pd1', 2) * 128 * LD))
    if stamps: a('s_memtime s[72:73]')
    if isw1:
        a('v_lshrrev_b32 v%d, 4, v%d' % (T0, V_LANE))
        a('v_lshlrev_b32 v%d, 2, v%d' % (T0, T0))
        a('s_waitcnt vmcnt(%d)' % nb1)
        for t in range(NT):
            d = acc(3, t)
            a('ds_bpermute_b32 v%d, v%d, v238 offset:%d' % (d + 2, T0, t * 16))
            a('ds_bpermute_b32 v%d, v%d, v239 offset:%d' % (d + 3, T0, t * 16))
            if t == 6: a('s_waitcnt lgkmcnt(0)')
        a('s_waitcnt lgkmcnt(0)')
        for t in range(NT):
            d = acc(3, t)
            a('v_lshlrev_b32 v%d, 16, v%d' % (d, d + 2))
            a('v_and_b32 v%d, 0xffff0000, v%d' % (d + 1, d + 2))
            a('v_lshlrev_b32 v%d, 16, v%d' % (d + 2, d + 3))
            a('v_and_b32 v%d, 0xffff0000, v%d' % (d + 3, d + 3))
    if stamps: a('s_memtime s[74:75]')
    rest = pro[nb1:]
    nrest = len(rest)
    npre = OV('npre', 8)
    for n in range(npre):
        for x in rest.pop(0): a(x)
    a('s_waitcnt vmcnt(%d)' % (4 + npre))
    if stamps: a('s_memtime s[76:77]')
    a('s_barrier')
    if stamps:
        a('s_memtime s[94:95]')
    for t in range(NT - 1):
        a(rd(t, 0, 0)); a(rd(t, 1, 0))
        if t >= 1 and rest:
            for x in rest.pop(0): a(x)
    assert not rest
    TAIL = 'notail' not in OPT
    a('s_mov_b32 s%d, 0' % S_RPOS)
    a('s_mov_b32 s%d, 7' % S_CNT)
    a('s_mov_b32 s66, 0x%x' % ((-(NS - 1) * STAGE) & 0xffffffff))
    a('s_mov_b32 s67, %d' % STAGE)
    a('s_waitcnt lgkmcnt(0)')
    def vadd(b):
        return 'v_add_u32 v%d, s%d, v%d' % (V_RD + b, S_RDELTA, V_RD + b)
    def emit_step(k, do_a=True, do_dma=True, first=False):
        odd = k % 2 == 1
        q = k % 2
        fill = {}
        def put(g, u, ins):
            fill.setdefault(4 * g + u, []).extend(ins if isinstance(ins, list) else [ins])
        nk = min(need_cnt(k), need_cnt(k + DA), need_cnt(k + 2 * DA))
        pre = ['s_waitcnt vmcnt(%d)' % nk]
        if not odd:
            pk = min(need_cnt(k - 1), need_cnt(k - 1 + DA), need_cnt(k - 1 + 2 * DA))
            if pk + len(step_ops(k - 1 + DA)) <= nk: pre = []
        if odd and 'nobar' not in OPT:
            pre.append('s_barrier')
        if first:
            pre = ['s_waitcnt vmcnt(%d)' % nrest]
            do_a = do_dma = False
            ops = vstep_list(-1) + vstep_list(0)
            pos = 2
            for o in ops:
                o = [x for x in o if x != 's_nop 0']
                if o[0].startswith('s_add_u32 m0'):
                    fill.setdefault(pos - 1, []).append(o[0]); o = o[1:]
                fill.setdefault(pos, []).extend(o)
                pos += 3
            assert pos - 3 < 4 * NT
        if 'nords' not in OPT:
            put(0, 0, rd(NT - 1, 0, q)); put(0, 1, rd(NT - 1, 1, q))
            for t in range(1, NT):
                put(t, 0, rd(t - 1, 0, 1 - q)); put(t, 1, rd(t - 1, 1, 1 - q))
        put(3, 3, 's_waitcnt lgkmcnt(8)')
        put(3 + NT // 2, 2 if NT == 14 else 3, 's_waitcnt lgkmcnt(8)')
        if do_a:
            for i in range(4):
                if 'noa' not in OPT: put(i, 2, aload((k + LA) % DA, i))
            put(4, 2, adv_a())
        ps = list(range(0, n_first)) if odd else list(range(n_first, ND))
        if do_dma:
            for n, p in enumerate(ps):
                g = 5 + 2 * n
                put(g - 1, 3, m0_set(p))
                if 'nodma' not in OPT: put(g, 2, dma(p))
        if not odd:
            assert len(ps) == 3
            adv = adv_dma()
            if do_dma:
                if isw1:
                    put(9, 3, adv[0]); put(11, 2, adv[1]); put(12, 2, adv[2:4]); put(13, 2, adv[4])
                else:
                    put(10, 2, adv[0:2]); put(10, 3, adv[2]); put(11, 2, adv[3:6])
            put(0, 3, 's_add_u32 s%d, s%d, 1' % (S_RPOS, S_RPOS))
            put(1, 3, ['s_cmp_eq_u32 s%d, %d' % (S_RPOS, NS), 's_cselect_b32 s%d, s66, s67' % S_RDELTA])
            put(1 if first else 2, 3, 's_cselect_b32 s%d, 0, s%d' % (S_RPOS, S_RPOS))
            if isw1:
                for b in range(4):
                    put(10 + b, 3, vadd(b))
            else:
                put(9, 3, vadd(0)); put(10, 3, vadd(1)); put(11, 3, vadd(2))
        else:
            if isw1:
                put(1, 3, vadd(4)); put(2, 3, vadd(5))
            else:
                put(1, 3, vadd(3))
        if PF1 and k == 1:
            put(4, 2, ['buffer_load_dword v246, v244, s[%d:%d], s68 offen%s' % (S_WSRD, S_WSRD + 3, FL('w1f')), 's_add_u32 s68, s68, %d' % (128 * LD)])
        if PFL2 and k == 1:
            put(4, 0, ['buffer_load_dword v242, v240, s[%d:%d], s82 offen%s' % (S_BSRD, S_BSRD + 3, FL('pf2f')), 's_add_u32 s82, s82, 0x100000'])
            put(4, 1, ['buffer_load_dword v243, v241, s[84:87], s83 offen%s' % FL('pf2f'), 's_add_u32 s83, s83, 0x80000'])
        for x in pre: a(x)
        for t in range(NT):
            for i in range(4):
                a(mfma(i, t, bfrag(t), afrag(k % DA, i), first))
                for x in fill.pop(4 * t + i, []): a(x)
        assert not fill, fill
    assert DA == 4
    emit_step(0, first=True)
    a.raw('.p2align 4')
    a.label(L + 'loop')
    for k in range(1, DA + 1):
        emit_step(k)
    if 'nocp' not in OPT:
        a('s_cmp_eq_u32 s%d, %d' % (S_CNT, OV('cp1', 3)))
        a('s_cbranch_scc1 %scp' % L)
        a.label(L + 'cp_ret')
    a('s_sub_u32 s%d, s%d, 1' % (S_CNT, S_CNT))
    a('s_cmp_lg_u32 s%d, 0' % S_CNT)
    a('s_cbranch_scc1 %sloop' % L)
    a.label(L + 'tail')
    def epi(p):
        r = []
        def st(b, so, off):
            return 'buffer_store_dwordx4 v[%d:%d], v%d, s[%d:%d], s%d offen offset:%d%s' % (b, b + 3, V_A, S_OSRD, S_OSRD + 3, so, off, SF)
        def cvt(b):
            return ['v_cvt_pk_bf16_f32 v%d, v%d, v%d' % (b + r_, b + 2 * r_, b + 2 * r_ + 1) for r_ in range(4)]
        if isw1:
            for i in range(4):
                b = acc(i, 2 * p)
                if 'pk' in OPT:
                    for r_ in range(0, 8, 2):
                        tt = T0 + (r_ & 2)
                        r.append('v_max_f32 v%d, 0, v%d' % (tt, b + r_))
                        r.append('v_max_f32 v%d, 0, v%d' % (tt + 1, b + r_ + 1))
                        r.append('v_pk_mul_f32 v[%d:%d], v[%d:%d], v[%d:%d]' % (b + r_, b + r_ + 1, tt, tt + 1, tt, tt + 1))
                    r += cvt(b)
                else:
                    for r_ in range(8):
                        r.append('v_mul_f32 v%d, v%d, abs(v%d)' % (b + r_, b + r_, b + r_))
                    r += cvt(b)
                    for r_ in range(4):
                        r.append('v_pk_max_i16 v%d, v%d, 0' % (b + r_, b + r_))
                r.append(st(b, S_ST + p, i * 1024))
        elif p < 4:
            for i in range(4):
                b = acc(i, 2 * p)
                for r_ in range(8):
                    if p < 2: r.append('v_mul_f32 v%d, s%d, v%d' % (b + r_, S_SCALE, b + r_))
                r += cvt(b)
                r.append(st(b, S_ST + p, i * 1024))
        else:
            hv = p - 4
            for dt in range(2):
                for ip in range(2):
                    b = acc(2 * ip, 8 + 2 * hv + dt)
                    r += cvt(b)
                    r.append(st(b, S_ST + 4 + hv, (ip * 2 + dt) * 1024))
        return r
    def pf2():
        if not isw1 and 'pf2end' in OPT:
            a('s_load_dwordx2 s[4:5], s[0:1], %d' % KA_W2)
            a('s_load_dwordx2 s[6:7], s[0:1], %d' % KA_WO)
            a('s_lshl_b32 s60, s%d, 5' % S_J)
            a('s_add_u32 s60, s60, s%d' % S_MG)
            a('s_lshl_b32 s60, s60, 13')
            a('s_add_u32 s61, s60, %d' % (4 * MB))
            a('v_lshlrev_b32 v%d, 7, v%d' % (T0, V_LANE))
            a('s_waitcnt lgkmcnt(0)')
            srd(a, S_WSRD, 4, 5, 3584 * 2048)
            srd(a, S_BSRD, 6, 7, 1024 * 2048)
            a('buffer_load_dword v%d, v%d, s[%d:%d], s60 offen%s' % (T1, T0, S_WSRD, S_WSRD + 3, FL('pf2f')))
            a('buffer_load_dword v%d, v%d, s[%d:%d], s61 offen%s' % (T2, T0, S_WSRD, S_WSRD + 3, FL('pf2f')))
            a('buffer_load_dword v%d, v%d, s[%d:%d], s60 offen%s' % (T3, T0, S_BSRD, S_BSRD + 3, FL('pf2f')))
    NP = NT // 2
    if TAIL:
        if stamps: a('s_memtime s[96:97]')
        assert DA == 4
        def xb(par, tl, kk): return XB + 16 * par + 8 * kk + 4 * tl
        def xreads(p):
            r = []
            for kk in range(2):
                for tl in range(2):
                    for s_ in range(2):
                        r.append(rd(2 * p + tl, s_, kk, dst=xb(p & 1, tl, kk)))
            return r
        a('s_waitcnt vmcnt(7)')
        a('s_barrier')
        a(rd(NT - 1, 0, 1)); a(rd(NT - 1, 1, 1))
        for b in ((4, 5) if isw1 else (3,)): a(vadd(b))
        for x in xreads(0): a(x)
        a('s_waitcnt lgkmcnt(10)')
        for p in range(NP):
            ms = []
            for kk in range(3):
                for tl in range(2):
                    for i in range(4):
                        t = 2 * p + tl
                        W = bfrag(t) if kk == 0 else xb(p & 1, tl, kk - 1)
                        ms.append(mfma(i, t, W, afrag((29 + kk) % DA, i)))
            nxt = xreads(p + 1) if p + 1 < NP else []
            ep = epi(p - 1) if p > 0 else []
            ngap = len(ms) - 4
            for g, m in enumerate(ms):
                if g == 8:
                    a('s_waitcnt lgkmcnt(%d)' % min(len(nxt), 8))
                if g == 16 and p == 0:
                    a('s_waitcnt vmcnt(0)')
                    pf2()
                a(m)
                if g < 4:
                    for x in nxt[2 * g:2 * g + 2]: a(x)
                    if not nxt: a('s_nop 0')
                else:
                    lo = (g - 4) * len(ep) // ngap; hi = (g - 3) * len(ep) // ngap
                    for x in ep[lo:hi]: a(x)
        a('s_nop 7')
        for x in epi(NP - 1): a(x)
    else:
        for k in (1, 2, 3): emit_step(k)
        if stamps: a('s_memtime s[96:97]')
        pf2()
        a('s_nop 7')
        for p in range(NP):
            for x in epi(p): a(x)
    if stamps:
        emit_stamps(a, S_W, 10, 64 * MB, S_ASRD, extra=True)
    a('s_endpgm')
    a.label(L + 'tail_end')
    if 'nocp' not in OPT:
        a.label(L + 'cp')
        a('s_cmp_lg_u32 s%d, 0' % S_W)
        a('s_cbranch_scc1 %scp2' % L)
        code_pf(a, L + 'tail', L + 'tail_end', 248, V_LANE, 88)
        a('s_branch %scp_ret' % L)
        a.label(L + 'cp2')
        if 'v1' not in OPT and 'probe' not in OPT:
            a('s_sub_u32 s69, s%d, 1' % S_W)
            code_pf(a, 'k3_kernel', 'K3_code_end', 248, V_LANE, 88, first_line=69)
        a('s_branch %scp_ret' % L)

MF = 'v_mfma_f32_16x16x32_bf16'
def gen_att(a):
    name = 'att_kernel'
    kernel_begin(a, name)
    KOFF, VOFF = 4096, 4096 + 32768
    Q = [8, 12]; KF = [16, 20]; VF = [24, 28]
    def S(par, T, q): return 32 + 16 * par + (q * 2 + T) * 4
    def C(T, q): return 64 + (q * 2 + T) * 4
    P = [80, 84]
    def O(q, d): return 88 + 12 * q + 4 * d
    ONES, MC, ML = 112, 116, 124
    M = [120, 121]; VKA, VVA = 122, 123
    VL16 = 1
    NEG = f2u(-1e30)
    a('s_cmp_ge_u32 s2, 256')
    a('s_cbranch_scc1 AT_end')
    a('s_load_dwordx2 s[4:5], s[0:1], %d' % KA_WS)
    a('v_lshrrev_b32 v2, 6, v0')
    a('v_and_b32 v3, 63, v0')
    a('v_readfirstlane_b32 s20, v2')
    a('v_lshlrev_b32 v%d, 4, v3' % VL16)
    a('s_and_b32 s21, s2, 31')
    a('s_lshr_b32 s22, s2, 5')
    a('s_waitcnt lgkmcnt(0)')
    srd(a, 8, 4, 5, 34 * MB)
    a('s_lshl_b32 s23, s21, 17')
    a('s_lshl_b32 s24, s22, 14')
    a('s_add_u32 s23, s23, s24')
    a('s_lshl_b32 s25, s20, 11')
    a('s_add_u32 s25, s25, s23')
    a('s_add_u32 s25, s25, %d' % WS_QK)
    a('buffer_load_dwordx4 v[%d:%d], v%d, s[8:11], s25 offen' % (Q[0], Q[0] + 3, VL16))
    a('buffer_load_dwordx4 v[%d:%d], v%d, s[8:11], s25 offen offset:1024' % (Q[1], Q[1] + 3, VL16))
    a('s_lshl_b32 s26, s20, 12')
    a('s_add_u32 s27, s24, s26')
    a('s_cmp_lt_u32 s27, 16384')
    a('s_cbranch_scc1 AT_nodma')
    a('s_add_u32 s27, s23, s26')
    a('s_add_u32 s28, s27, %d' % (WS_QK + 4 * MB - 16384))
    a('s_add_u32 s29, s27, %d' % (WS_VT - 16384))
    a('s_add_u32 m0, s26, %d' % KOFF)
    a('s_nop 0')
    for e in range(4):
        a('buffer_load_dwordx4 v%d, s[8:11], s28 offen offset:%d lds' % (VL16, e * 1024))
    a('s_add_u32 m0, s26, %d' % VOFF)
    a('s_nop 0')
    for e in range(4):
        a('buffer_load_dwordx4 v%d, s[8:11], s29 offen offset:%d lds' % (VL16, e * 1024))
    a.label('AT_nodma')
    a('v_and_b32 v4, 15, v3')
    a('v_lshrrev_b32 v5, 4, v3')
    a('v_lshlrev_b32 v5, 2, v5')
    a('v_mov_b32 v6, 0x%x' % NEG)
    for r in range(4):
        a('v_add_u32 v7, %d, v5' % r)
        a('v_cmp_le_u32 vcc, v7, v4')
        a('s_nop 1')
        a('v_cndmask_b32 v%d, v6, 0, vcc' % (MC + r))
        a('v_cndmask_b32 v%d, 0, v6, vcc' % (ML + r))
        a('v_mov_b32 v%d, 0x3f803f80' % (ONES + r))
    for q in range(2):
        for d in range(3):
            for r in range(4):
                a('v_mov_b32 v%d, 0' % (O(q, d) + r))
        a('v_mov_b32 v%d, v6' % M[q])
    a('s_add_u32 s30, s20, 1')
    a('s_cmp_eq_u32 s22, 0')
    a('s_cselect_b32 s30, s30, 9')
    a('s_lshl_b32 s31, s20, 11')
    a('s_add_u32 s31, s31, %d' % (KOFF + 16384))
    a('s_waitcnt vmcnt(0)')
    a('s_barrier')

    def setC(kind, p2):
        tab = {'diag': {(0, 0): 'c', (0, 1): '0', (1, 0): 'n', (1, 1): 'c'},
               'mid': {(0, 0): '0', (0, 1): '0', (1, 0): '0', (1, 1): '0'},
               'first': {(0, 0): 'l', (0, 1): 'n', (1, 0): '0', (1, 1): 'l'}}[kind]
        for (T, q), k in tab.items():
            for r in range(4):
                d = C(T, q) + r
                if k == 'n':
                    a('v_mov_b32 v%d, v6' % d)
                elif k == '0':
                    a('v_mov_b32 v%d, %s' % (d, ('v%d' % M[q]) if p2 else '0'))
                else:
                    src = (MC if k == 'c' else ML) + r
                    if p2: a('v_add_f32 v%d, v%d, v%d' % (d, src, M[q]))
                    else: a('v_mov_b32 v%d, v%d' % (d, src))
    def rdK():
        a('ds_read_b128 v[%d:%d], v%d' % (KF[0], KF[0] + 3, VKA))
        a('ds_read_b128 v[%d:%d], v%d offset:1024' % (KF[1], KF[1] + 3, VKA))
        a('v_subrev_u32 v%d, 2048, v%d' % (VKA, VKA))
    def rdV():
        a('ds_read_b128 v[%d:%d], v%d offset:32768' % (VF[0], VF[0] + 3, VVA))
        a('ds_read_b128 v[%d:%d], v%d offset:33792' % (VF[1], VF[1] + 3, VVA))
        a('v_subrev_u32 v%d, 2048, v%d' % (VVA, VVA))
    def mfS(par):
        for q in range(2):
            for T in range(2):
                d = S(par, T, q); c = C(T, q)
                a('%s v[%d:%d], v[%d:%d], v[%d:%d], v[%d:%d]' % (MF, d, d + 3, KF[T], KF[T] + 3, Q[q], Q[q] + 3, c, c + 3))
    for p2 in (0, 1):
        L = 'AT%d_' % p2
        a('v_add_u32 v%d, s31, v%d' % (VKA, VL16))
        a('v_add_u32 v%d, s31, v%d' % (VVA, VL16))
        rdK()
        setC('diag', p2)
        a('s_mov_b32 s32, 0')
        a('s_waitcnt lgkmcnt(0)')
        mfS(0)
        rdK()
        a('s_nop 1')
        setC('mid', p2)
        a.label(L + 'loop')
        for par in range(2):
            if p2: rdV()
            a('s_cmp_lg_u32 s32, 7')
            a('s_cbranch_scc1 %sskip%d' % (L, par))
            setC('first', p2)
            a('s_nop 1')
            a.label(L + 'skip%d' % par)
            a('s_waitcnt lgkmcnt(%d)' % (2 if p2 else 0))
            mfS(1 - par)
            rdK()
            if not p2:
                for q in range(2):
                    b = S(par, 0, q)
                    for r in range(0, 8, 2):
                        a('v_max3_f32 v%d, v%d, v%d, v%d' % (M[q], M[q], b + r, b + r + 1))
            else:
                for q in range(2):
                    b = S(par, 0, q)
                    for r in range(8):
                        a('v_exp_f32 v%d, v%d' % (b + r, b + r))
                    if q == 1: a('s_nop 0')
                for q in range(2):
                    b = S(par, 0, q)
                    for r in range(4):
                        a('v_cvt_pk_bf16_f32 v%d, v%d, v%d' % (P[q] + r, b + 2 * r, b + 2 * r + 1))
                a('s_waitcnt lgkmcnt(2)')
                a('s_nop 0')
                for q in range(2):
                    for d in range(3):
                        o = O(q, d); src = VF[d] if d < 2 else ONES
                        a('%s v[%d:%d], v[%d:%d], v[%d:%d], v[%d:%d]' % (MF, o, o + 3, src, src + 3, P[q], P[q] + 3, o, o + 3))
            a('s_add_u32 s32, s32, 1')
            a('s_cmp_eq_u32 s32, s30')
            if par == 0:
                a('s_cbranch_scc1 %sdone' % L)
            else:
                a('s_cbranch_scc0 %sloop' % L)
        a.label(L + 'done')
        if not p2:
            for q in range(2):
                m = M[q]
                a('v_mov_b32 v7, v%d' % m)
                a('s_nop 1')
                a('v_permlane16_swap_b32 v%d, v7' % m)
                a('s_nop 1')
                a('v_max_f32 v%d, v%d, v7' % (m, m))
                a('v_mov_b32 v7, v%d' % m)
                a('s_nop 1')
                a('v_permlane32_swap_b32 v%d, v7' % m)
                a('s_nop 1')
                a('v_max_f32 v%d, v%d, v7' % (m, m))
                a('v_sub_f32 v%d, 0, v%d' % (m, m))
            a('s_waitcnt lgkmcnt(0)')
    a('s_lshl_b32 s33, s22, 2')
    a('s_lshr_b32 s34, s20, 1')
    a('s_add_u32 s33, s33, s34')
    a('s_mul_i32 s33, s33, %d' % HO_MG)
    a('s_lshl_b32 s34, s21, 12')
    a('s_add_u32 s33, s33, s34')
    a('s_and_b32 s34, s20, 1')
    a('s_lshl_b32 s34, s34, 11')
    a('s_add_u32 s33, s33, s34')
    a('s_add_u32 s33, s33, %d' % (WS_HO + 112 * 4096))
    a('s_nop 3')
    for q in range(2):
        a('v_rcp_f32 v7, v%d' % O(q, 2))
        a('s_nop 0')
        b = O(q, 0)
        for r in range(8):
            a('v_mul_f32 v%d, v%d, v7' % (b + r, b + r))
        for r in range(4):
            a('v_cvt_pk_bf16_f32 v%d, v%d, v%d' % (b + r, b + 2 * r, b + 2 * r + 1))
        a('buffer_store_dwordx4 v[%d:%d], v%d, s[8:11], s33 offen offset:%d' % (b, b + 3, VL16, q * 1024))
    a.label('AT_end')
    a('s_endpgm')
    return name, kd(name, 128, 128), (256, 512, 4096 + 65536)

def gen_gemm2(a, stamps=False):
    name = 'gemm2_kernel'
    kernel_begin(a, name)
    NT = 4; DA = 8
    ACC, SAV, XR = 0, 32, 64
    V_RD, V_D, V_A, V_O = 80, 84, 85, 86
    T0, T1, T2, T3 = 88, 89, 90, 91
    V_LANE = 92
    def acc(i, t): return (i * NT + t) * 4
    def bfrag(par, t): return 16 * par + 4 * t
    def afrag(slot, i): return 32 + 8 * slot + 4 * i
    S_WSRD, S_ASRD, S_XSRD, S_OSRD, S_BSRD = 20, 24, 28, 32, 36
    S_W, S_BOFF, S_AOFF, S_WOFF, S_CNT, S_OOFF, S_OOFF2 = 40, 41, 42, 43, 44, 45, 46
    a('s_cmp_ge_u32 s2, 256')
    a('s_cbranch_scc1 G2_end')
    a('s_load_dwordx2 s[4:5], s[0:1], %d' % KA_W2)
    a('s_load_dwordx2 s[6:7], s[0:1], %d' % KA_WO)
    a('s_load_dwordx2 s[8:9], s[0:1], %d' % KA_B2)
    a('s_load_dwordx2 s[10:11], s[0:1], %d' % KA_WS)
    a('s_load_dwordx2 s[12:13], s[0:1], %d' % KA_X)
    a('s_load_dwordx2 s[14:15], s[0:1], %d' % KA_OUT)
    if stamps:
        a('s_memrealtime s[90:91]')
        a('s_memtime s[92:93]')
    a('v_lshrrev_b32 v%d, 6, v0' % T0)
    a('v_and_b32 v%d, 63, v0' % V_LANE)
    a('v_readfirstlane_b32 s%d, v%d' % (S_W, T0))
    a('s_and_b32 s50, s2, 7')
    a('s_lshr_b32 s51, s2, 3')
    a('s_lshr_b32 s52, s50, 1')
    a('s_lshl_b32 s52, s52, 2')
    a('s_and_b32 s53, s51, 3')
    a('s_add_u32 s52, s52, s53')
    a('s_and_b32 s53, s50, 1')
    a('s_lshl_b32 s53, s53, 3')
    a('s_lshr_b32 s54, s51, 2')
    a('s_add_u32 s53, s53, s54')
    a('v_lshrrev_b32 v%d, 4, v%d' % (T0, V_LANE))
    a('v_bfe_u32 v%d, v%d, 2, 2' % (T1, V_LANE))
    a('v_and_b32 v%d, 1, v%d' % (T2, T0))
    a('v_lshl_add_u32 v%d, v%d, 2, v%d' % (T2, T2, T1))
    a('v_and_b32 v%d, 6, v%d' % (T3, T2))
    a('v_bfe_u32 v%d, v%d, 1, 1' % (T1, V_LANE))
    a('v_or_b32 v%d, v%d, v%d' % (T3, T3, T1))
    a('v_lshrrev_b32 v%d, 1, v%d' % (T0, T0))
    a('v_lshlrev_b32 v%d, 10, v%d' % (T0, T0))
    a('v_lshl_add_u32 v%d, v%d, 7, v%d' % (T0, T2, T0))
    a('v_and_b32 v%d, 1, v%d' % (T1, V_LANE))
    a('v_lshl_add_u32 v%d, v%d, 3, v%d' % (T0, T1, T0))
    for b in range(4):
        a('v_xor_b32 v%d, %d, v%d' % (T1, 2 * b, T3))
        a('v_lshl_add_u32 v%d, v%d, 4, v%d' % (V_RD + b, T1, T0))
    a('v_lshrrev_b32 v%d, 3, v%d' % (T0, V_LANE))
    a('v_and_b32 v%d, 6, v%d' % (T1, T0))
    a('v_and_b32 v%d, 7, v%d' % (T2, V_LANE))
    a('v_xor_b32 v%d, v%d, v%d' % (T1, T1, T2))
    a('v_lshlrev_b32 v%d, 11, v%d' % (T0, T0))
    a('v_lshl_add_u32 v%d, v%d, 4, v%d' % (V_D, T1, T0))
    a('s_lshl_b32 s55, s%d, 14' % S_W)
    a('s_lshl_b32 s56, s53, 7')
    a('s_add_u32 s55, s55, s56')
    a('v_add_u32 v%d, s55, v%d' % (V_D, V_D))
    a('v_lshlrev_b32 v%d, 4, v%d' % (V_A, V_LANE))
    a('v_and_b32 v%d, 15, v%d' % (T0, V_LANE))
    a('v_lshlrev_b32 v%d, 11, v%d' % (T0, T0))
    a('v_lshrrev_b32 v%d, 4, v%d' % (T1, V_LANE))
    a('v_lshl_add_u32 v%d, v%d, 3, v%d' % (V_O, T1, T0))
    a('v_lshlrev_b32 v%d, 3, v%d' % (T2, T1))
    a('s_lshl_b32 s57, s52, 18')
    a('s_lshl_b32 s58, s%d, 16' % S_W)
    a('s_add_u32 s57, s57, s58')
    a('s_add_u32 s%d, s57, s56' % S_OOFF)
    a('s_add_u32 s%d, s%d, 32768' % (S_OOFF2, S_OOFF))
    a('s_mov_b32 s%d, 0' % S_BOFF)
    a('s_and_b32 s%d, s%d, 1' % (S_AOFF, S_W))
    a('s_lshl_b32 s%d, s%d, 11' % (S_AOFF, S_AOFF))
    a('s_lshl_b32 s%d, s%d, 10' % (S_WOFF, S_W))
    a('s_lshl_b32 s58, s52, 1')
    a('s_lshr_b32 s59, s%d, 1' % S_W)
    a('s_add_u32 s58, s58, s59')
    a('s_mul_i32 s58, s58, %d' % HO_MG)
    a('s_add_u32 s58, s58, %d' % WS_HO)
    a('s_waitcnt lgkmcnt(0)')
    srd(a, S_WSRD, 4, 5, 3584 * 2048)
    a('s_add_u32 s60, s10, s58')
    a('s_addc_u32 s61, s11, 0')
    srd(a, S_ASRD, 60, 61, HO_MG)
    srd(a, S_BSRD, 8, 9, 2048)
    srd(a, S_XSRD, 12, 13, 4 * MB)
    srd(a, S_OSRD, 14, 15, 4 * MB)
    def m0_set(slot): return 's_add_u32 m0, s%d, %d' % (S_WOFF, slot * 4096)
    def dma(): return 'buffer_load_dwordx4 v%d, s[%d:%d], s%d offen%s lds' % (V_D, S_WSRD, S_WSRD + 3, S_BOFF, FL('w2f'))
    def adv_b(): return 's_add_u32 s%d, s%d, 65536' % (S_BOFF, S_BOFF)
    def aload(slot, i):
        b = afrag(slot, i)
        return 'buffer_load_dwordx4 a[%d:%d], v%d, s[%d:%d], s%d offen offset:%d%s' % (b, b + 3, V_A, S_ASRD, S_ASRD + 3, S_AOFF, i * 1024, FL('a2f'))
    def adv_a(): return 's_add_u32 s%d, s%d, 4096' % (S_AOFF, S_AOFF)
    def rd(k, t, s):
        b = bfrag(k & 1, t) + 2 * s
        return 'ds_read_b64_tr_b16 a[%d:%d], v%d offset:%d' % (b, b + 1, V_RD + t, (k % 16) * 4096 + s * 2048)
    for t in range(NT):
        d = acc(1, t) + 2
        a('buffer_load_dwordx2 v[%d:%d], v%d, s[%d:%d], s56 offen offset:%d' % (d, d + 1, T2, S_BSRD, S_BSRD + 3, t * 32))
    def vstep(v):
        if v >= -7:
            a(aload((v + 7) % DA, 0)); a(aload((v + 7) % DA, 1)); a(adv_a())
        a(m0_set((v + 10) % 16)); a('s_nop 0'); a(dma()); a(adv_b())
    for v in range(-10, -2):
        vstep(v)
    a('s_waitcnt vmcnt(18)')
    for t in range(NT):
        d = acc(1, t); e = acc(0, t)
        a('v_lshlrev_b32 v%d, 16, v%d' % (d, d + 2))
        a('v_and_b32 v%d, 0xffff0000, v%d' % (d + 1, d + 2))
        a('v_lshlrev_b32 v%d, 16, v%d' % (d + 2, d + 3))
        a('v_and_b32 v%d, 0xffff0000, v%d' % (d + 3, d + 3))
        for r in range(4):
            a('v_mov_b32 v%d, v%d' % (e + r, d + r))
    a('s_waitcnt vmcnt(12)')
    a('s_barrier')
    if stamps: a('s_memtime s[94:95]')
    for t in range(NT):
        a(rd(0, t, 0)); a(rd(0, t, 1))
    vstep(-2)
    for t in range(NT - 1):
        a(rd(1, t, 0)); a(rd(1, t, 1))
    vstep(-1)
    a('s_mov_b32 s%d, 0' % S_CNT)
    a('s_waitcnt lgkmcnt(0)')
    a.raw('.p2align 4')
    a.label('G2_loop')
    a('s_cmp_eq_u32 s%d, 7' % S_CNT)
    a('s_cbranch_scc1 G2_accsw')
    a.label('G2_accsw_ret')
    for k in range(16):
        fill = {}
        def put(p, ins): fill.setdefault(p, []).extend(ins if isinstance(ins, list) else [ins])
        if k % 2 == 0: a('s_waitcnt vmcnt(12) lgkmcnt(6)')
        else: a('s_waitcnt lgkmcnt(6)')
        if k % 4 == 2: a('s_barrier')
        if k == 6:
            a('s_cmp_eq_u32 s%d, 6' % S_CNT)
            a('s_cbranch_scc1 G2_srdsw')
            a.label('G2_srdsw_ret')
        put(0, rd(k + 1, NT - 1, 0)); put(1, rd(k + 1, NT - 1, 1))
        for t in range(1, NT):
            put(2 * t, rd(k + 2, t - 1, 0)); put(2 * t + 1, rd(k + 2, t - 1, 1))
        if 'noa2' not in OPT:
            put(0, aload((k + 7) % DA, 0)); put(2, aload((k + 7) % DA, 1))
        put(3, adv_a())
        put(4, m0_set((k + 10) % 16))
        if 'nodma2' not in OPT: put(5, dma())
        put(6, adv_b())
        for t in range(NT):
            for i in range(2):
                c = acc(i, t); W = bfrag(k & 1, t); X = afrag(k % DA, i)
                a('%s v[%d:%d], a[%d:%d], a[%d:%d], v[%d:%d]' % (MF, c, c + 3, W, W + 3, X, X + 3, c, c + 3))
                for x in fill.pop(2 * t + i, []): a(x)
        assert not fill
    a('s_add_u32 s%d, s%d, 1' % (S_CNT, S_CNT))
    a('s_cmp_lt_u32 s%d, 9' % S_CNT)
    a('s_cbranch_scc1 G2_loop')
    if stamps: a('s_memtime s[96:97]')
    a('s_mov_b32 s62, 0x%x' % f2u(-math.log2(math.e)))
    for i in range(2):
        for t in range(NT):
            g = SAV + acc(i, t)
            for r in range(4):
                a('v_mul_f32 v%d, s62, v%d' % (T0 + r, g + r))
            for r in range(4):
                a('v_exp_f32 v%d, v%d' % (T0 + r, T0 + r))
            a('s_nop 0')
            for r in range(4):
                a('v_add_f32 v%d, 1.0, v%d' % (T0 + r, T0 + r))
            for r in range(4):
                a('v_rcp_f32 v%d, v%d' % (T0 + r, T0 + r))
            a('s_nop 0')
            for r in range(4):
                a('v_mul_f32 v%d, v%d, v%d' % (g + r, g + r, T0 + r))
    for i in range(2):
        for t in range(NT):
            g = SAV + acc(i, t); sv = acc(i, t); x = XR + (i * NT + t) * 2
            a('v_lshlrev_b32 v%d, 16, v%d' % (T0, x))
            a('v_and_b32 v%d, 0xffff0000, v%d' % (T1, x))
            a('v_lshlrev_b32 v%d, 16, v%d' % (T2, x + 1))
            a('v_and_b32 v%d, 0xffff0000, v%d' % (T3, x + 1))
            for r in range(4):
                a('v_fmac_f32 v%d, v%d, v%d' % (T0 + r, sv + r, g + r))
            a('v_cvt_pk_bf16_f32 v%d, v%d, v%d' % (x, T0, T1))
            a('v_cvt_pk_bf16_f32 v%d, v%d, v%d' % (x + 1, T2, T3))
            a('buffer_store_dwordx2 v[%d:%d], v%d, s[%d:%d], s%d offen offset:%d' % (x, x + 1, V_O, S_OSRD, S_OSRD + 3, S_OOFF2 if i else S_OOFF, t * 32))
    if stamps:
        emit_stamps(a, S_W, 10, 65 * MB, S_ASRD)
    a.label('G2_end')
    a('s_endpgm')
    a.label('G2_accsw')
    for i in range(2):
        for t in range(NT):
            x = XR + (i * NT + t) * 2
            a('buffer_load_dwordx2 v[%d:%d], v%d, s[%d:%d], s%d offen offset:%d' % (x, x + 1, V_O, S_XSRD, S_XSRD + 3, S_OOFF2 if i else S_OOFF, t * 32))
    for r in range(0, 32, 2):
        a('v_pk_mov_b32 v[%d:%d], v[%d:%d], v[%d:%d] op_sel:[0,1]' % (SAV + r, SAV + r + 1, r, r + 1, r, r + 1))
    for r in range(0, 32, 2):
        a('v_pk_mov_b32 v[%d:%d], 0, 0' % (r, r + 1))
    a('s_nop 1')
    a('s_branch G2_accsw_ret')
    a.label('G2_srdsw')
    srd(a, S_WSRD, 6, 7, 1024 * 2048)
    a('s_mov_b32 s%d, 0' % S_BOFF)
    a('s_branch G2_srdsw_ret')
    return name, kd(name, 96 + 96, 96), (256, 256, 65536)

def emit_stamps(a, S_W, S_WS, off, S_SRD, nw_log=2, extra=False):
    a('s_waitcnt vmcnt(0)')
    a('s_memtime s[98:99]')
    a('s_memrealtime s[100:101]')
    a('s_waitcnt lgkmcnt(0)')
    a('s_sub_u32 s94, s94, s92')
    a('s_sub_u32 s96, s96, s92')
    a('s_sub_u32 s98, s98, s92')
    a('v_mov_b32 v0, s90')
    a('v_mov_b32 v1, s94')
    a('v_mov_b32 v2, s96')
    a('v_mov_b32 v3, s98')
    a('v_mov_b32 v4, s100')
    a('s_lshl_b32 s60, s2, %d' % nw_log)
    a('s_add_u32 s60, s60, s%d' % S_W)
    a('s_lshl_b32 s60, s60, 6')
    a('v_mov_b32 v8, s60')
    a('s_add_u32 s62, s%d, %d' % (S_WS, off))
    a('s_addc_u32 s63, s%d, 0' % (S_WS + 1))
    srd(a, S_SRD, 62, 63, 1 * MB)
    a('buffer_store_dwordx4 v[0:3], v8, s[%d:%d], 0 offen' % (S_SRD, S_SRD + 3))
    a('buffer_store_dword v4, v8, s[%d:%d], 0 offen offset:16' % (S_SRD, S_SRD + 3))
    if extra:
        for n in range(4):
            a('s_sub_u32 s%d, s%d, s92' % (70 + 2 * n, 70 + 2 * n))
            a('v_mov_b32 v%d, s%d' % (12 + n, 70 + 2 * n))
        a('buffer_store_dwordx4 v[12:15], v8, s[%d:%d], 0 offen offset:32' % (S_SRD, S_SRD + 3))

SPIN_MAX = 400000
WS_FLAG = 44 * MB
WS_END = 45 * MB
WS_P = 36 * MB
def gen_k3(a, stamps=False):
    name = 'k3_kernel'
    M32 = 'v_mfma_f32_32x32x16_bf16'
    kernel_begin(a, name)
    ACC, SACC, PIN, WF, AF = 0, 64, 96, 128, 160
    V_RD, V_D0, V_D1, V_A, V_O, V_FLAG, V_Z, V_LANE = 224, 226, 227, 228, 229, 230, 231, 232
    V_P, V_B, V_PF = 233, 234, 235
    S_QSRD, S_QOFF, S_QSTR = 52, 56, 59
    T0 = 236
    XR = 240
    BR = 32
    def wfrag(n): return WF + 4 * n
    def afrag(slot, mf): return AF + 8 * slot + 4 * mf
    S_WSRD, S_ASRD, S_XSRD, S_OSRD, S_BSRD, S_FSRD, S_PSRD = 20, 24, 28, 32, 36, 64, 76
    S_W, S_BOFF, S_AOFF, S_T, S_CNT, S_OOFF, S_ROLE, S_TILE = 40, 41, 42, 43, 44, 45, 46, 47
    S_TEND, S_T0, S_RPOS, S_RDELTA, S_FOFF, S_FMINE, S_FPART = 48, 49, 68, 69, 63, 62, 75
    S_POUT, S_PINO, S_COL = 80, 81, 82
    RING = 81920
    a('s_cmp_ge_u32 s2, 256')
    a('s_cbranch_scc1 K3_att')
    a('s_load_dwordx2 s[4:5], s[0:1], %d' % KA_W2)
    a('s_load_dwordx2 s[10:11], s[0:1], %d' % KA_WS)
    a('s_load_dwordx2 s[6:7], s[0:1], %d' % KA_WO)
    a('s_load_dwordx2 s[8:9], s[0:1], %d' % KA_B2)
    a('s_load_dwordx2 s[12:13], s[0:1], %d' % KA_X)
    a('s_load_dwordx2 s[16:17], s[0:1], %d' % KA_OUT)
    if stamps:
        a('s_memrealtime s[90:91]')
        a('s_memtime s[92:93]')
    if OV('gprio0', 3): a('s_setprio %d' % OV('gprio0', 3))
    a('v_lshrrev_b32 v%d, 6, v0' % T0)
    a('v_and_b32 v%d, 63, v0' % V_LANE)
    a('v_readfirstlane_b32 s%d, v%d' % (S_W, T0))
    a('s_and_b32 s50, s2, 7')
    a('s_lshr_b32 s51, s2, 3')
    if OV('map3', 0) == 0:
        a('s_lshr_b32 s%d, s51, 4' % S_ROLE)
        a('s_lshr_b32 s52, s50, 1')
        a('s_lshl_b32 s52, s52, 2')
        a('s_and_b32 s53, s51, 3')
        a('s_add_u32 s52, s52, s53')
        a('s_and_b32 s53, s50, 1')
        a('s_lshl_b32 s53, s53, 2')
        a('s_bfe_u32 s54, s51, 0x20002')
        a('s_add_u32 s53, s53, s54')
    elif OV('map3', 0) == 2:
        a('s_and_b32 s%d, s50, 1' % S_ROLE)
        a('s_lshr_b32 s52, s50, 1')
        a('s_lshl_b32 s52, s52, 2')
        a('s_and_b32 s53, s51, 3')
        a('s_add_u32 s52, s52, s53')
        a('s_lshr_b32 s53, s51, 2')
    else:
        a('s_lshr_b32 s%d, s50, 2' % S_ROLE)
        a('s_bfe_u32 s52, s50, 0x10001')
        a('s_lshl_b32 s52, s52, 3')
        a('s_and_b32 s53, s51, 7')
        a('s_add_u32 s52, s52, s53')
        a('s_and_b32 s53, s50, 1')
        a('s_lshl_b32 s53, s53, 2')
        a('s_lshr_b32 s54, s51, 3')
        a('s_add_u32 s53, s53, s54')
    a('s_lshl_b32 s%d, s52, 3' % S_TILE)
    a('s_add_u32 s%d, s%d, s53' % (S_TILE, S_TILE))
    a('v_lshrrev_b32 v%d, 3, v%d' % (T0, V_LANE))
    a('v_and_b32 v%d, 2, v%d' % (T0 + 1, T0))
    a('v_lshlrev_b32 v%d, 1, v%d' % (T0 + 1, T0 + 1))
    a('v_and_b32 v%d, 7, v%d' % (T0 + 2, V_LANE))
    a('v_xor_b32 v%d, v%d, v%d' % (T0 + 1, T0 + 1, T0 + 2))
    a('v_lshlrev_b32 v%d, 11, v%d' % (T0, T0))
    a('v_lshl_add_u32 v%d, v%d, 4, v%d' % (V_D0, T0 + 1, T0))
    a('s_lshl_b32 s55, s%d, 14' % S_W)
    a('s_lshl_b32 s56, s53, 8')
    a('s_lshl_b32 s57, s%d, 7' % S_ROLE)
    a('s_add_u32 s%d, s56, s57' % S_COL)
    a('s_add_u32 s55, s55, s%d' % S_COL)
    a('v_add_u32 v%d, s55, v%d' % (V_D0, V_D0))
    a('v_xor_b32 v%d, 128, v%d' % (V_D1, V_D0))
    a('v_bfe_u32 v%d, v%d, 4, 1' % (T0, V_LANE))
    a('v_lshlrev_b32 v%d, 10, v%d' % (T0, T0))
    a('v_lshrrev_b32 v%d, 5, v%d' % (T0 + 1, V_LANE))
    a('v_lshl_add_u32 v%d, v%d, 8, v%d' % (T0, T0 + 1, T0))
    a('v_and_b32 v%d, 15, v%d' % (T0 + 2, V_LANE))
    a('v_lshl_add_u32 v%d, v%d, 4, v%d' % (V_A, T0 + 2, T0))
    a('s_mul_i32 s%d, s%d, %d' % (S_BOFF, S_ROLE, 56 * 65536))
    a('s_mul_i32 s%d, s%d, %d' % (S_AOFF, S_ROLE, 56 * 4096))
    a('s_lshl_b32 s%d, s%d, 11' % (S_T0, S_W))
    a('s_mov_b32 s%d, s%d' % (S_T, S_T0))
    a('s_add_u32 s%d, s%d, %d' % (S_TEND, S_T0, RING))
    a('s_lshl_b32 s58, s52, 1')
    a('s_lshr_b32 s59, s%d, 1' % S_W)
    a('s_add_u32 s58, s58, s59')
    a('s_mul_i32 s58, s58, %d' % HO_MG)
    a('s_and_b32 s57, s%d, 1' % S_W)
    a('s_lshl_b32 s57, s57, 11')
    a('s_add_u32 s58, s58, s57')
    a('s_add_u32 s58, s58, %d' % WS_HO)
    a('s_waitcnt lgkmcnt(0)')
    srd(a, S_WSRD, 4, 5, 3584 * 2048)
    a('s_add_u32 s60, s10, s58')
    a('s_addc_u32 s61, s11, 0')
    srd(a, S_ASRD, 60, 61, HO_MG - 2048)
    def m0_set(nb): return 's_add_u32 m0, s%d, %d' % (S_T, nb * 1024)
    def dma(nb): return 'buffer_load_dwordx4 v%d, s[%d:%d], s%d offen%s lds' % (V_D1 if nb else V_D0, S_WSRD, S_WSRD + 3, S_BOFF, FL('w2f'))
    def adv_b(): return ['s_add_u32 s%d, s%d, 65536' % (S_BOFF, S_BOFF), 's_add_u32 s%d, s%d, 8192' % (S_T, S_T)]
    def wrap_b(): return ['s_cmp_eq_u32 s%d, s%d' % (S_T, S_TEND), 's_cselect_b32 s%d, s%d, s%d' % (S_T, S_T0, S_T)]
    def aload(slot, mf):
        b = afrag(slot, mf)
        return 'buffer_load_dwordx4 v[%d:%d], v%d, s[%d:%d], s%d offen offset:%d sc1' % (b, b + 3, V_A, S_ASRD, S_ASRD + 3, S_AOFF, mf * 512)
    def adv_a(): return 's_add_u32 s%d, s%d, 4096' % (S_AOFF, S_AOFF)
    def rd(q, n, s_, dst=None):
        mf, T = n >> 2, n & 3
        b = wfrag(n if dst is None else dst) + 2 * s_
        return 'ds_read_b64_tr_b16 v[%d:%d], v%d offset:%d' % (b, b + 1, V_RD + (T & 1), q * 8192 + (2 * s_ + mf) * 2048 + (T >> 1) * 1024)
    def vstep(v):
        for nb in range(2):
            a(m0_set(nb)); a('s_nop 0'); a(dma(nb))
        for x in adv_b(): a(x)
        a(aload((v + 7) % 8, 0)); a(aload((v + 7) % 8, 1)); a(adv_a())
    vstep(-7); vstep(-6)
    a('v_lshrrev_b32 v%d, 5, v%d' % (T0, V_LANE))
    a('v_bfe_u32 v%d, v%d, 2, 2' % (T0 + 1, V_LANE))
    a('v_lshl_add_u32 v%d, v%d, 2, v%d' % (T0, T0, T0 + 1))
    a('v_lshlrev_b32 v%d, 7, v%d' % (T0, T0))
    a('v_bfe_u32 v%d, v%d, 4, 1' % (T0 + 2, V_LANE))
    a('v_lshl_add_u32 v%d, v%d, 5, v%d' % (T0, T0 + 2, T0))
    a('v_and_b32 v%d, 1, v%d' % (T0 + 2, V_LANE))
    a('v_lshl_add_u32 v%d, v%d, 4, v%d' % (T0, T0 + 2, T0))
    a('v_bfe_u32 v%d, v%d, 1, 1' % (T0 + 2, V_LANE))
    a('v_lshl_add_u32 v%d, v%d, 3, v%d' % (T0, T0 + 2, T0))
    a('v_bfe_u32 v%d, v%d, 3, 1' % (T0 + 2, V_LANE))
    a('v_lshl_add_u32 v%d, v%d, 6, v%d' % (V_RD, T0 + 2, T0))
    a('v_xor_b32 v%d, 64, v%d' % (V_RD + 1, V_RD))
    for r in range(0, 64, 2):
        a('v_pk_mov_b32 v[%d:%d], 0, 0' % (r, r + 1))
    vstep(-5); vstep(-4)
    srd(a, S_BSRD, 8, 9, 2048)
    srd(a, S_XSRD, 12, 13, 4 * MB)
    srd(a, S_OSRD, 16, 17, 4 * MB)
    a('s_add_u32 s60, s10, %d' % WS_FLAG)
    a('s_addc_u32 s61, s11, 0')
    srd(a, S_FSRD, 60, 61, 131072)
    a('s_add_u32 s60, s10, %d' % WS_P)
    a('s_addc_u32 s61, s11, 0')
    srd(a, S_PSRD, 60, 61, 8 * MB)
    a('v_and_b32 v%d, 31, v%d' % (T0, V_LANE))
    a('v_lshlrev_b32 v%d, 2, v%d' % (V_Z, T0))
    a('v_lshlrev_b32 v%d, 11, v%d' % (T0, T0))
    a('v_lshrrev_b32 v%d, 5, v%d' % (T0 + 1, V_LANE))
    a('v_lshl_add_u32 v%d, v%d, 4, v%d' % (V_O, T0 + 1, T0))
    a('v_lshlrev_b32 v%d, 4, v%d' % (V_B, T0 + 1))
    a('v_lshlrev_b32 v%d, 4, v%d' % (V_P, V_LANE))
    a('s_lshl_b32 s57, s52, 18')
    a('s_lshl_b32 s58, s%d, 16' % S_W)
    a('s_add_u32 s57, s57, s58')
    a('s_add_u32 s%d, s57, s%d' % (S_OOFF, S_COL))
    a('s_lshr_b32 s%d, s52, 1' % S_FOFF)
    a('s_lshl_b32 s%d, s%d, 12' % (S_FOFF, S_FOFF))
    a('s_lshl_b32 s57, s%d, 1' % S_TILE)
    a('s_add_u32 s57, s57, s%d' % S_ROLE)
    a('s_lshl_b32 s%d, s57, 8' % S_FMINE)
    a('s_add_u32 s%d, s%d, 65536' % (S_FMINE, S_FMINE))
    a('s_xor_b32 s%d, s%d, 256' % (S_FPART, S_FMINE))
    a('s_lshl_b32 s57, s57, 15')
    a('s_lshl_b32 s58, s%d, 13' % S_W)
    a('s_add_u32 s%d, s57, s58' % S_POUT)
    a('s_xor_b32 s%d, s%d, 32768' % (S_PINO, S_POUT))
    PF = 'nopf3' not in OPT
    PD = OV('pd', 2)
    if PF:
        assert OV('map3', 0) == 0
        a('s_mov_b32 s18, s52')
        a('s_mov_b32 s19, s53')
        a('s_cmp_ge_u32 s%d, 2' % S_W)
        a('s_cbranch_scc1 K3_pfw')
        a('s_lshl_b32 s57, s18, 1')
        a('s_add_u32 s57, s57, s%d' % S_W)
        a('s_mul_i32 s57, s57, %d' % HO_MG)
        a('s_add_u32 s57, s57, %d' % WS_HO)
        a('s_add_u32 s60, s10, s57')
        a('s_addc_u32 s61, s11, 0')
        srd(a, S_QSRD, 60, 61, 112 * 4096)
        a('s_and_b32 s57, s19, 3')
        a('s_lshl_b32 s57, s57, 13')
        a('s_mul_i32 s%d, s%d, %d' % (S_QOFF, S_ROLE, 56 * 4096))
        a('s_add_u32 s%d, s%d, s57' % (S_QOFF, S_QOFF))
        a('s_mov_b32 s%d, 32768' % S_QSTR)
        a('v_lshlrev_b32 v%d, 7, v%d' % (V_PF, V_LANE))
        a('s_branch K3_pfd')
        a.label('K3_pfw')
        srd(a, S_QSRD, 4, 5, 3584 * 2048)
        a('s_and_b32 s57, s18, 3')
        a('s_lshl_b32 s57, s57, 1')
        a('s_add_u32 s57, s57, s%d' % S_W)
        a('s_sub_u32 s57, s57, 2')
        a('s_lshl_b32 s57, s57, 16')
        a('s_mul_i32 s%d, s%d, %d' % (S_QOFF, S_ROLE, 56 * 65536))
        a('s_add_u32 s%d, s%d, s57' % (S_QOFF, S_QOFF))
        a('s_lshl_b32 s57, s19, 8')
        a('s_add_u32 s%d, s%d, s57' % (S_QOFF, S_QOFF))
        a('s_mov_b32 s%d, 524288' % S_QSTR)
        a('v_lshrrev_b32 v%d, 1, v%d' % (T0, V_LANE))
        a('v_lshlrev_b32 v%d, 11, v%d' % (T0, T0))
        a('v_and_b32 v%d, 1, v%d' % (T0 + 1, V_LANE))
        a('v_lshl_add_u32 v%d, v%d, 7, v%d' % (V_PF, T0 + 1, T0))
        a.label('K3_pfd')
        a('s_add_u32 s%d, s%d, s%d' % (S_QOFF, S_QOFF, S_QSTR))
    def pf():
        return ['buffer_load_dword v%d, v%d, s[%d:%d], s%d offen%s' % (T0 + 3, V_PF, S_QSRD, S_QSRD + 3, S_QOFF, FL('pf3f')),
                's_add_u32 s%d, s%d, s%d' % (S_QOFF, S_QOFF, S_QSTR)]
    a('s_waitcnt vmcnt(8)')
    a('s_barrier')
    if stamps: a('s_memtime s[94:95]')
    for n in range(8):
        a(rd(0, n, 0)); a(rd(0, n, 1))
        if n == 3: a('s_waitcnt lgkmcnt(2)')
    vstep(-3); vstep(-2); vstep(-1)
    if PF:
        for i in range(PD - 1):
            for x in pf(): a(x)
    a('s_mov_b32 s%d, 0' % S_CNT)
    a('s_mov_b32 s%d, 0' % S_RPOS)
    a('s_mov_b32 s70, 0x%x' % ((-(RING - 16384)) & 0xffffffff))
    a('s_mov_b32 s71, 16384')
    a('s_setprio %d' % OV('gprio', 0))
    a('s_waitcnt lgkmcnt(0)')
    a.raw('.p2align 4')
    a.label('K3_loop')
    for k in range(8):
        odd = k & 1
        fill = {}
        def put(p, ins): fill.setdefault(p, []).extend(ins if isinstance(ins, list) else [ins])
        if odd:
            a('s_waitcnt vmcnt(16)')
            a('s_barrier')
            a('v_add_u32 v%d, s%d, v%d' % (V_RD, S_RDELTA, V_RD))
            a('v_add_u32 v%d, s%d, v%d' % (V_RD + 1, S_RDELTA, V_RD + 1))
        if k == 1:
            a('s_cmp_eq_u32 s%d, 6' % S_CNT)
            a('s_cbranch_scc1 K3_osw')
            a.label('K3_osw_ret')
            if 'oswst' in OPT: a('s_memtime s[86:87]')
        if k == 1 and PF:
            a('s_cmp_eq_u32 s%d, %d' % (S_CNT, 7 - PD))
            a('s_cbranch_scc1 K3_pfwo')
            a.label('K3_pfwo_ret')
            put(0, pf())
        if k == 4 and 'xlate' not in OPT:
            a('s_cmp_lt_u32 s%d, 4' % S_CNT)
            a('s_cbranch_scc1 K3_xl')
            a.label('K3_xl_ret')
        if k == 6:
            a('s_cmp_eq_u32 s%d, 5' % S_CNT)
            a('s_cbranch_scc1 K3_fl')
            a.label('K3_fl_ret')
        for n in range(8):
            put(n, [rd(1 - odd, n, 0), rd(1 - odd, n, 1)])
        put(0, m0_set(0));
        if 'nodma2' not in OPT: put(1, dma(0))
        put(2, m0_set(1))
        if 'nodma2' not in OPT: put(3, dma(1))
        put(3, adv_b()[0]); put(4, adv_b()[1]); put(4, wrap_b())
        if 'noa2' not in OPT:
            put(5, aload((k + 7) % 8, 0)); put(6, aload((k + 7) % 8, 1))
        put(7, adv_a())
        if not odd:
            put(6, ['s_add_u32 s%d, s%d, 1' % (S_RPOS, S_RPOS), 's_cmp_eq_u32 s%d, 5' % S_RPOS,
                    's_cselect_b32 s%d, s70, s71' % S_RDELTA, 's_cselect_b32 s%d, 0, s%d' % (S_RPOS, S_RPOS)])
        for n in range(8):
            if n % 2 == 0: a('s_waitcnt lgkmcnt(12)')
            mf, T = n >> 2, n & 3
            c = ACC + 16 * T; W = wfrag(n); X = afrag(k, mf)
            a('%s v[%d:%d], v[%d:%d], v[%d:%d], v[%d:%d]' % (M32, c, c + 15, W, W + 3, X, X + 3, c, c + 15))
            for x in fill.pop(n, []): a(x)
        assert not fill
    a('s_add_u32 s%d, s%d, 1' % (S_CNT, S_CNT))
    a('s_cmp_lt_u32 s%d, 7' % S_CNT)
    a('s_cbranch_scc1 K3_loop')
    if stamps: a('s_memtime s[96:97]')
    a.label('K3_oph')
    vq = []
    for j in range(0, 7):
        vq += [('D', j), ('Dx', j), ('A', j), ('A', j)]
    def need(tags):
        idx = [i for i, t in enumerate(vq) if t in tags]
        assert len(set(vq[i] for i in idx)) == len(set(tags)), (tags, vq)
        return len(vq) - 1 - max(idx)
    ST0, STS = OV('st0', 0), OV('sts', 1)
    FSTEP = OV('fstep', 5)
    PFL, PCHK = OV('pfl', 12), OV('pchk', 16)
    XB = OV('xb', 6); XW = OV('xw', 9)
    BRAW = ACC + 32 if 'xlate' in OPT else PIN
    c_nl2e = 's72'
    PB = 'pbf16' in OPT
    early = []
    XU = ACC + 32
    for e in range(16):
        early.append('v_lshlrev_b32 v%d, 16, v%d' % (T0, BRAW + e))
        early.append('v_and_b32 v%d, 0xffff0000, v%d' % (T0 + 1, BRAW + e))
        early.append('v_add_f32 v%d, v%d, v%d' % (2 * e, 2 * e, T0))
        early.append('v_add_f32 v%d, v%d, v%d' % (2 * e + 1, 2 * e + 1, T0 + 1))
    for e in range(16):
        early.append('v_lshlrev_b32 v%d, 16, v%d' % (XU + 2 * e, XR + e))
        early.append('v_and_b32 v%d, 0xffff0000, v%d' % (XU + 2 * e + 1, XR + e))
    late = []
    for u in range(4):
        g = 8 * u; p = PIN + 8 * u
        blk = []
        if PB:
            for r in range(4):
                raw = PIN + 16 + 4 * u + r
                blk.append('v_lshlrev_b32 v%d, 16, v%d' % (p + 2 * r, raw))
                blk.append('v_and_b32 v%d, 0xffff0000, v%d' % (p + 2 * r + 1, raw))
        for r in range(8): blk.append('v_add_f32 v%d, v%d, v%d' % (g + r, g + r, p + r))
        for r in range(8): blk.append('v_mul_f32 v%d, %s, v%d' % (p + r, c_nl2e, g + r))
        for r in range(8): blk.append('v_exp_f32 v%d, v%d' % (p + r, p + r))
        for r in range(8): blk.append('v_add_f32 v%d, 1.0, v%d' % (p + r, p + r))
        for r in range(8): blk.append('v_rcp_f32 v%d, v%d' % (p + r, p + r))
        for r in range(8): blk.append('v_mul_f32 v%d, v%d, v%d' % (g + r, g + r, p + r))
        late.append((('P', u), blk))
    a('s_mov_b32 s72, 0x%x' % f2u(-math.log2(math.e)))
    stage = 28
    early_steps = list(range(XB + XW, PCHK + 5)) if 'xlate' in OPT else list(range(FSTEP + 1, PCHK))
    late_steps = list(range(PCHK + OV('lw', 5), 32))
    late_flat = []
    for tag, blk in late:
        late_flat.append(('W', tag))
        late_flat += blk
    VPS = OV('vps', 18)
    for j in range(32):
        odd = j & 1
        fill = {0: [], 1: [], 2: [], 3: []}
        tags = set()
        if odd:
            for jj in (j + 1, j + 2):
                if jj < 32: tags.add(('D', jj))
            for jj in (j, j + 1):
                if jj < 32: tags.add(('A', jj))
        if 'xlate' in OPT and j == XB + XW: tags |= {('X', 0), ('B', 0)}
        if j == FSTEP:
            a('s_waitcnt vmcnt(0)')
        elif tags:
            a('s_waitcnt vmcnt(%d)' % need(tags))
        if odd and j + 1 < 32:
            a('s_barrier')
            ns = stage + 1
            delta = ((ns % 5) - (stage % 5)) * 16384
            stage = ns
            a('v_add_u32 v%d, 0x%x, v%d' % (V_RD, delta & 0xffffffff, V_RD))
            a('v_add_u32 v%d, 0x%x, v%d' % (V_RD + 1, delta & 0xffffffff, V_RD + 1))
        if j == FSTEP:
            a('s_cmp_lg_u32 s%d, 0' % S_W)
            a('s_cbranch_scc1 K3_nofl')
            a('v_mov_b32 v%d, 1' % T0)
            a('buffer_store_dword v%d, v%d, s[%d:%d], s%d offen sc1' % (T0, V_Z, S_FSRD, S_FSRD + 3, S_FMINE))
            a.label('K3_nofl')
        if j == PCHK:
            a('s_waitcnt vmcnt(%d)' % need({('F', 0)}))
            a('v_cmp_eq_u32 vcc, 1, v%d' % V_FLAG)
            a('s_nop 1')
            a('s_cmp_eq_u64 vcc, -1')
            a('s_cbranch_scc0 K3_pspin')
            a.label('K3_pgo')
        if stamps:
            pts = [int(x) for x in (FL('pts').strip() or '8,12,20,24').split(',')]
            if j in pts: a('s_memtime s[%d:%d]' % (84 + 2 * pts.index(j) if pts.index(j) < 3 else 14, 85 + 2 * pts.index(j) if pts.index(j) < 3 else 15))
        par = j & 1
        def oset(par_, mf, T): return mf * 4 + T + 2 * par_
        if j + 1 < 32:
            rds = []
            for mf in range(2):
                for T in range(2):
                    for s_ in range(2):
                        rds.append(rd(1 - odd, mf * 4 + T, s_, dst=oset(1 - par, mf, T)))
            fill[0] += rds[0:3]; fill[1] += rds[3:6]; fill[2] += rds[6:8]
        vm = []
        if j + 7 < 32:
            slot = (56 + j + 7) % 10
            fill[0].append('s_add_u32 m0, s%d, %d' % (S_T0, slot * 8192))
            vm.append((1, ('D', j + 7), [dma(0), adv_b()[0]]))
            vm.append((2, ('A', j + 7), [aload((j + 7) % 8, 0)]))
            vm.append((3, ('A', j + 7), [aload((j + 7) % 8, 1), adv_a()]))
        SPS = OV('sps', 8)
        if PB and j == 0:
            for e in range(4):
                cv = ['v_cvt_pk_bf16_f32 v%d, v%d, v%d' % (ACC + 32 + 4 * e + r, ACC + 32 + 8 * e + 2 * r, ACC + 33 + 8 * e + 2 * r) for r in range(4)]
                vm.append((1 + e * 3 // 4, ('S', e), cv + ['buffer_store_dwordx4 v[%d:%d], v%d, s[%d:%d], s%d offen offset:%d sc1' %
                           (ACC + 32 + 4 * e, ACC + 35 + 4 * e, V_P, S_PSRD, S_PSRD + 3, S_POUT, e * 1024)]))
        for e in range(j * SPS, min(8, (j + 1) * SPS)) if not PB else []:
            pre = ['s_add_u32 s57, s%d, 4096' % S_POUT] if e == 4 else []
            vm.append((3 if SPS < 4 else 1 + (e % SPS) * 3 // SPS, ('S', e), pre + ['buffer_store_dwordx4 v[%d:%d], v%d, s[%d:%d], s%d offen offset:%d sc1' %
                       (ACC + 32 + 4 * e, ACC + 35 + 4 * e, V_P, S_PSRD, S_PSRD + 3, 57 if e >= 4 else S_POUT, (e % 4) * 1024)]))
        if 'xlate' in OPT and XB <= j < XB + 4:
            u = j - XB
            vm.append((3, ('B', 0), ['buffer_load_dwordx4 v[%d:%d], v%d, s[%d:%d], s%d offen offset:%d' % (BRAW + 4 * u, BRAW + 4 * u + 3, V_B, S_BSRD, S_BSRD + 3, S_COL, u * 32)]))
            vm.append((3, ('X', 0), ['buffer_load_dwordx4 v[%d:%d], v%d, s[%d:%d], s%d offen offset:%d' % (XR + 4 * u, XR + 4 * u + 3, V_O, S_XSRD, S_XSRD + 3, S_OOFF, u * 32)]))
        if j == PFL:
            vm.append((3, ('F', 0), ['buffer_load_dword v%d, v%d, s[%d:%d], s%d offen sc1' % (V_FLAG, V_Z, S_FSRD, S_FSRD + 3, S_FPART)]))
        if PB and PCHK <= j < PCHK + 2:
            for h in range(2):
                u = 2 * (j - PCHK) + h
                vm.append((h, ('P', u), ['buffer_load_dwordx4 v[%d:%d], v%d, s[%d:%d], s%d offen offset:%d sc1' %
                           (PIN + 16 + 4 * u, PIN + 19 + 4 * u, V_P, S_PSRD, S_PSRD + 3, S_PINO, u * 1024)]))
        if not PB and PCHK <= j < PCHK + 4:
            u = j - PCHK
            pre = ['s_add_u32 s57, s%d, 4096' % S_PINO] if u == 2 else []
            for h in range(2):
                e = 2 * u + h
                vm.append((h, ('P', u), (pre if h == 0 else []) + ['buffer_load_dwordx4 v[%d:%d], v%d, s[%d:%d], s%d offen offset:%d sc1' %
                           (PIN + 4 * e, PIN + 4 * e + 3, V_P, S_PSRD, S_PSRD + 3, 57 if e >= 4 else S_PINO, (e % 4) * 1024)]))
        sh = []
        if j in early_steps:
            n = -(-len(early) // (early_steps[-1] - j + 1))
            sh = early[:n]; early = early[n:]
        if j in late_steps:
            sh = late_flat[:VPS]; late_flat = late_flat[VPS:]
        a('s_waitcnt lgkmcnt(0)') if j > 0 else a('s_waitcnt lgkmcnt(4)')
        for g in range(4):
            mf, T = g >> 1, g & 1
            c = SACC + 16 * T; W = wfrag(oset(par, mf, T)); X = afrag(j % 8, mf)
            cs = '0' if (j == 0 and mf == 0) else 'v[%d:%d]' % (c, c + 15)
            a('%s v[%d:%d], v[%d:%d], v[%d:%d], %s' % (M32, c, c + 15, W, W + 3, X, X + 3, cs))
            for x in fill[g]: a(x)
            for (gg, tag, ins) in vm:
                if gg == g:
                    for x in ins: a(x)
                    vq.append(tag)
            lo = g * len(sh) // 4; hi = (g + 1) * len(sh) // 4
            for x in sh[lo:hi]:
                if isinstance(x, tuple): a('s_waitcnt vmcnt(%d)' % need({x[1]}))
                else: a(x)
    assert not early
    for x in late_flat:
        if isinstance(x, tuple): a('s_waitcnt vmcnt(%d)' % need({x[1]}))
        else: a(x)
    a('s_nop 7')
    a('s_nop 3')
    for u in range(4):
        g = 8 * u
        for r in range(8):
            a('v_fmac_f32 v%d, v%d, v%d' % (XU + g + r, g + r, SACC + g + r))
        for r in range(4):
            a('v_cvt_pk_bf16_f32 v%d, v%d, v%d' % (XR + 4 * u + r, XU + g + 2 * r, XU + g + 2 * r + 1))
        a('buffer_store_dwordx4 v[%d:%d], v%d, s[%d:%d], s%d offen offset:%d%s' % (XR + 4 * u, XR + 4 * u + 3, V_O, S_OSRD, S_OSRD + 3, S_OOFF, u * 32, FL('s3f')))
    if stamps:
        a('s_waitcnt lgkmcnt(0)')
        a('s_mov_b32 s70, s84'); a('s_mov_b32 s72, s86'); a('s_mov_b32 s74, s88'); a('s_mov_b32 s76, s14')
        emit_stamps(a, S_W, 10, 65 * MB, S_ASRD, extra=True)
    a('s_endpgm')
    def spin(lbl, foff, ret):
        a.label(lbl)
        a('s_mov_b32 s74, 0')
        a.label(lbl + '_l')
        a('s_sleep %d' % OV('slp', 4))
        a('buffer_load_dword v%d, v%d, s[%d:%d], s%d offen sc1' % (V_FLAG, V_Z, S_FSRD, S_FSRD + 3, foff))
        a('s_add_u32 s74, s74, 1')
        a('s_cmp_gt_u32 s74, %d' % SPIN_MAX)
        a('s_cbranch_scc1 %s' % ret)
        a('s_waitcnt vmcnt(0)')
        a('v_cmp_eq_u32 vcc, 1, v%d' % V_FLAG)
        a('s_nop 1')
        a('s_cmp_eq_u64 vcc, -1')
        a('s_cbranch_scc0 %s_l' % lbl)
        a('s_branch %s' % ret)
    spin('K3_pspin', S_FPART, 'K3_pgo')
    spin('K3_ospin', S_FOFF, 'K3_osw_ret')
    if 'xlate' not in OPT:
        a.label('K3_xl')
        for u in range(4):
            if u < 3:
                a('s_cmp_lg_u32 s%d, %d' % (S_CNT, u))
                a('s_cbranch_scc1 K3_xl%d' % u)
            a('buffer_load_dwordx4 v[%d:%d], v%d, s[%d:%d], s%d offen offset:%d' % (XR + 4 * u, XR + 4 * u + 3, V_O, S_XSRD, S_XSRD + 3, S_OOFF, u * 32))
            if u == 3 and 'nocp' not in OPT:
                code_pf(a, 'K3_oph', 'K3_att', T0, V_LANE, 14, first_line=S_W)
            if u == 3:
                for w_ in range(4):
                    a('buffer_load_dwordx4 v[%d:%d], v%d, s[%d:%d], s%d offen offset:%d' % (BRAW + 4 * w_, BRAW + 4 * w_ + 3, V_B, S_BSRD, S_BSRD + 3, S_COL, w_ * 32))
            a('s_branch K3_xl_ret')
            if u < 3: a.label('K3_xl%d' % u)
    a.label('K3_fl')
    a('buffer_load_dword v%d, v%d, s[%d:%d], s%d offen sc1' % (V_FLAG, V_Z, S_FSRD, S_FSRD + 3, S_FOFF))
    a('s_branch K3_fl_ret')
    if PF:
        a.label('K3_pfwo')
        srd(a, S_QSRD, 6, 7, 1024 * 2048)
        a('s_and_b32 s57, s18, 3')
        a('s_lshl_b32 s58, s%d, 2' % S_W)
        a('s_add_u32 s57, s57, s58')
        a('s_lshl_b32 s57, s57, 17')
        a('s_add_u32 s%d, s57, s%d' % (S_QOFF, S_COL))
        a('s_mov_b32 s%d, 0x1000000' % S_QSTR)
        a('v_lshlrev_b32 v%d, 11, v%d' % (V_PF, V_LANE))
        a('s_branch K3_pfwo_ret')
    a.label('K3_osw')
    if 'oswst' in OPT: a('s_memtime s[84:85]')
    srd(a, S_WSRD, 6, 7, 1024 * 2048)
    a('s_mov_b32 s%d, 0' % S_BOFF)
    a('s_mov_b32 s%d, %d' % (S_AOFF, 112 * 4096))
    a('v_mov_b32 v%d, 0x7fff0000' % V_D1)
    if PF:
        a('s_lshl_b32 s57, s18, 1')
        a('s_and_b32 s58, s%d, 1' % S_W)
        a('s_add_u32 s57, s57, s58')
        a('s_mul_i32 s57, s57, %d' % HO_MG)
        a('s_add_u32 s57, s57, %d' % (WS_HO + 112 * 4096))
        a('s_add_u32 s60, s10, s57')
        a('s_addc_u32 s61, s11, 0')
        srd(a, S_QSRD, 60, 61, 32 * 4096)
        a('s_and_b32 s57, s19, 3')
        a('s_lshl_b32 s57, s57, 1')
        a('s_add_u32 s57, s57, s%d' % S_ROLE)
        a('s_lshr_b32 s58, s%d, 1' % S_W)
        a('s_lshl_b32 s58, s58, 3')
        a('s_add_u32 s57, s57, s58')
        a('s_lshl_b32 s%d, s57, 13' % S_QOFF)
        a('v_lshlrev_b32 v%d, 7, v%d' % (V_PF, V_LANE))
    a('s_waitcnt vmcnt(12)')
    a('v_cmp_eq_u32 vcc, 1, v%d' % V_FLAG)
    a('s_nop 1')
    a('s_cmp_eq_u64 vcc, -1')
    a('s_cbranch_scc0 K3_ospin')
    a('s_branch K3_osw_ret')
    a.label('K3_att')
    att_body(a, stamps)
    a.label('K3_code_end')
    a('s_endpgm')
    return name, kd(name, 256, 256), (512, 256, RING)

def att_body(a, stamps):
    VOFF = 32768
    QA = 144
    Q = [8, 12]
    def KB(b, T): return 16 + 8 * b + 4 * T
    def VB(b, d): return 32 + 8 * b + 4 * d
    def S(par, T, q): return 48 + 16 * par + (q * 2 + T) * 4
    def P(par, q): return 80 + 8 * par + 4 * q
    def O(q, d): return 96 + 12 * q + 4 * d
    ONES, MC, ML, Z, ML1 = 120, 124, 128, 132, 136
    M = [140, 141]; VKA = 142
    def CM(q): return 160 + 4 * q
    def CC(q): return 168 + 4 * q
    def CL(q): return 176 + 4 * q
    VL16 = 1
    NEG = f2u(-1e30)
    a('s_cmp_ge_u32 s2, 512')
    a('s_cbranch_scc1 AT_end')
    a('s_load_dwordx2 s[6:7], s[0:1], %d' % KA_WS)
    a('s_load_dwordx2 s[4:5], s[0:1], %d' % KA_B2)
    if stamps:
        a('s_memrealtime s[90:91]')
        a('s_memtime s[92:93]')
    pr = OV('attprio', 3)
    if OV('attprio0', 3): a('s_setprio %d' % OV('attprio0', 3))
    a('v_lshrrev_b32 v2, 6, v0')
    a('v_and_b32 v3, 63, v0')
    a('v_readfirstlane_b32 s20, v2')
    a('v_lshlrev_b32 v%d, 4, v3' % VL16)
    a('s_and_b32 s21, s2, 7')
    a('s_lshl_b32 s21, s21, 2')
    a('s_bfe_u32 s22, s2, 0x20003')
    a('s_add_u32 s21, s21, s22')
    a('s_bfe_u32 s22, s2, 0x30005')
    a('s_lshl_b32 s23, s21, 17')
    a('s_lshl_b32 s24, s22, 14')
    a('s_add_u32 s23, s23, s24')
    a('s_lshl_b32 s25, s20, 11')
    a('s_add_u32 s25, s25, s23')
    a('s_add_u32 s25, s25, %d' % WS_QK)
    a('s_add_u32 s35, s25, 8192')
    a('s_lshl_b32 s26, s20, 13')
    a('s_add_u32 s27, s23, s26')
    a('s_waitcnt lgkmcnt(0)')
    srd(a, 8, 6, 7, WS_END)
    if 'noatt' in OPT:
        a('s_memtime s[94:95]')
        a('s_branch AT_skip')
    def dmas(base, lo):
        for hf in range(2):
            a('s_add_u32 s28, s27, %d' % (base + hf * 4096))
            a('s_add_u32 m0, s26, %d' % (lo + hf * 4096))
            a('s_nop 0')
            for e in range(4):
                a('buffer_load_dwordx4 v%d, s[8:11], s28 offen offset:%d lds' % (VL16, e * 1024))
    for q in range(2):
        a('buffer_load_dwordx4 v[%d:%d], v%d, s[8:11], s25 offen offset:%d' % (QA + 4 * q, QA + 4 * q + 3, VL16, q * 1024))
    dmas(WS_QK + 4 * MB - 16384, 0)
    dmas(WS_VT - 16384, VOFF)
    for q in range(2):
        a('buffer_load_dwordx4 v[%d:%d], v%d, s[8:11], s35 offen offset:%d' % (QA + 8 + 4 * q, QA + 8 + 4 * q + 3, VL16, q * 1024))
    a('v_and_b32 v4, 15, v3')
    a('v_lshrrev_b32 v5, 4, v3')
    a('v_lshlrev_b32 v5, 2, v5')
    a('v_mov_b32 v6, 0x%x' % NEG)
    for r in range(4):
        a('v_add_u32 v7, %d, v5' % r)
        a('v_cmp_le_u32 vcc, v7, v4')
        a('s_nop 1')
        a('v_cndmask_b32 v%d, v6, 0, vcc' % (MC + r))
        a('v_cndmask_b32 v%d, 0, v6, vcc' % (ML + r))
        a('v_mov_b32 v%d, 0x3f803f80' % (ONES + r))
    a('s_mov_b32 s36, s20')
    a('s_waitcnt vmcnt(10)')
    a('s_barrier')
    a('s_setprio %d' % pr)
    if stamps: a('s_memtime s[94:95]')
    a.label('AT_task')
    a('s_lshl_b32 s31, s36, 11')
    a('v_add_u32 v%d, s31, v%d' % (VKA, VL16))
    def rdK(j, b):
        return ['ds_read_b128 v[%d:%d], v%d offset:%d' % (KB(b, T), KB(b, T) + 3, VKA, (8 - j) * 2048 + T * 1024) for T in range(2)]
    def rdV(j, b):
        return ['ds_read_b128 v[%d:%d], v%d offset:%d' % (VB(b, d), VB(b, d) + 3, VKA, VOFF + (8 - j) * 2048 + d * 1024) for d in range(2)]
    for j in range(3):
        for x in rdK(j, j): a(x)
    for r in range(8):
        a('v_mov_b32 v%d, v%d' % (Q[0] + r, QA + r))
    for r in range(4):
        a('v_mov_b32 v%d, 0' % (Z + r))
        a('v_mov_b32 v%d, v%d' % (ML1 + r, ML + r))
    for q in range(2):
        a('v_mov_b32 v%d, v6' % M[q])
    a('s_add_u32 s30, s36, 1')
    a('s_cmp_eq_u32 s22, 0')
    a('s_cselect_b32 s30, s30, 9')
    def tiles(j):
        t = [(0, 0), (1, 0), (0, 1), (1, 1)]
        if j == 0: t.remove((1, 0))
        if j == 8: t.remove((0, 1))
        return t
    def creg(j, T, q, p2):
        if j == 0 and T == q: return CC(q) if p2 else MC
        if j == 8 and T == q: return CL(q) if p2 else ML1
        return CM(q) if p2 else Z
    def mfS(j, kb, p2):
        r = []
        for (T, q) in tiles(j):
            d = S(j & 1, T, q); c = creg(j, T, q, p2)
            r.append('%s v[%d:%d], v[%d:%d], v[%d:%d], v[%d:%d]' % (MF, d, d + 3, KB(kb, T), KB(kb, T) + 3, Q[q], Q[q] + 3, c, c + 3))
        return r
    def chk(j, p2):
        a('s_cmp_eq_u32 s30, %d' % j)
        a('s_cbranch_scc1 AT_inv%d_%d' % (p2, j))
        a.label('AT_inv%d_%d_ret' % (p2, j))
    def interleave(ms, vs, lead=0):
        n = len(ms)
        if n == 0:
            for x in vs: a(x)
            return
        for g, m in enumerate(ms):
            a(m)
            lo = g * len(vs) // n; hi = (g + 1) * len(vs) // n
            for x in vs[lo:hi]: a(x)
    for j in range(10):
        ms = []
        if j <= 8:
            if j >= 1: chk(j, 0)
            younger = 2 * (min(j + 2, 8) - j)
            a('s_waitcnt lgkmcnt(%d)' % younger)
            ms = mfS(j, j % 4, 0)
        vs = []
        if j >= 1:
            for (T, q) in tiles(j - 1):
                b = S((j - 1) & 1, T, q)
                vs.append('v_max3_f32 v%d, v%d, v%d, v%d' % (M[q], M[q], b, b + 1))
                vs.append('v_max3_f32 v%d, v%d, v%d, v%d' % (M[q], M[q], b + 2, b + 3))
        else:
            vs = ['v_mov_b32 v%d, 0' % (O(0, 0) + r) for r in range(8)]
        if j + 3 <= 8: vs = rdK(j + 3, (j + 3) % 4) + vs
        if j == 9:
            vs = rdK(0, 0) + rdK(1, 1) + ['v_mov_b32 v%d, 0' % (O(0, 0) + r) for r in range(8, 24)] + vs
        interleave(ms, vs)
    for q in range(2):
        a('v_mov_b32 v%d, v%d' % (4 + q, M[q]))
    a('s_nop 0')
    for q in range(2):
        a('v_permlane16_swap_b32 v%d, v%d' % (M[q], 4 + q))
    a('s_nop 0')
    for q in range(2):
        a('v_max_f32 v%d, v%d, v%d' % (M[q], M[q], 4 + q))
    for q in range(2):
        a('v_mov_b32 v%d, v%d' % (4 + q, M[q]))
    a('s_nop 0')
    for q in range(2):
        a('v_permlane32_swap_b32 v%d, v%d' % (M[q], 4 + q))
    a('s_nop 0')
    for q in range(2):
        a('v_max_f32 v%d, v%d, v%d' % (M[q], M[q], 4 + q))
    for q in range(2):
        for r in range(4):
            a('v_sub_f32 v%d, v%d, v%d' % (CC(q) + r, MC + r, M[q]))
        for r in range(4):
            a('v_sub_f32 v%d, 0, v%d' % (CM(q) + r, M[q]))
    a('s_cmp_ge_u32 s36, 4')
    a('s_cbranch_scc1 AT_vok')
    a('s_waitcnt vmcnt(0)')
    a('s_barrier')
    srd(a, 12, 4, 5, 2048)
    a('v_lshlrev_b32 v7, 5, v3')
    a('buffer_load_dword v7, v7, s[12:15], 0 offen')
    a.label('AT_vok')
    a('s_waitcnt lgkmcnt(2)')
    vs = []
    for q in range(2):
        for r in range(4):
            vs.append('v_sub_f32 v%d, v%d, v%d' % (CL(q) + r, ML + r, M[q]))
    vs += ['v_mov_b32 v%d, v%d' % (QA + r, QA + 8 + r) for r in range(8)]
    interleave(mfS(0, 0, 1), vs)
    for j in range(10):
        ms = []
        pre = []
        if j + 2 <= 8: pre += rdK(j + 2, j % 2)
        if j <= 8: pre += rdV(j, j % 2)
        if j + 1 <= 8: chk(j + 1, 1)
        for x in pre: a(x)
        a('s_waitcnt lgkmcnt(%d)' % len(pre))
        if j + 1 <= 8: ms += mfS(j + 1, (j + 1) % 2, 1)
        if j >= 1:
            for q in range(2):
                for d in range(3):
                    o = O(q, d); src = VB((j - 1) % 2, d) if d < 2 else ONES; p = P((j - 1) & 1, q)
                    ms.append('%s v[%d:%d], v[%d:%d], v[%d:%d], v[%d:%d]' % (MF, o, o + 3, src, src + 3, p, p + 3, o, o + 3))
        vs = []
        if j <= 8:
            tl = tiles(j)
            ex = {}
            for (T, q) in tl:
                b = S(j & 1, T, q)
                ex[(T, q)] = ['v_exp_f32 v%d, v%d' % (b + r, b + r) for r in range(4)]
            def cv(T, q):
                p = P(j & 1, q) + 2 * T
                if (T, q) not in tl:
                    return ['v_mov_b32 v%d, 0' % p, 'v_mov_b32 v%d, 0' % (p + 1)]
                b = S(j & 1, T, q)
                return ['v_cvt_pk_bf16_f32 v%d, v%d, v%d' % (p, b, b + 1), 'v_cvt_pk_bf16_f32 v%d, v%d, v%d' % (p + 1, b + 2, b + 3)]
            for (T, q) in tl: vs += ex[(T, q)]
            for q in range(2):
                for T in range(2): vs += cv(T, q)
        if j == 9:
            a('s_nop 0')
        interleave(ms, vs)
    a('s_lshl_b32 s33, s22, 2')
    a('s_lshr_b32 s34, s36, 1')
    a('s_add_u32 s33, s33, s34')
    a('s_mul_i32 s33, s33, %d' % HO_MG)
    a('s_lshl_b32 s34, s21, 12')
    a('s_add_u32 s33, s33, s34')
    a('s_and_b32 s34, s36, 1')
    a('s_lshl_b32 s34, s34, 11')
    a('s_add_u32 s33, s33, s34')
    a('s_add_u32 s33, s33, %d' % (WS_HO + 112 * 4096))
    for q in range(2):
        a('v_rcp_f32 v%d, v%d' % (4 + q, O(q, 2)))
    for q in range(2):
        b = O(q, 0)
        for r in range(8):
            a('v_mul_f32 v%d, v%d, v%d' % (b + r, b + r, 4 + q))
        for r in range(4):
            a('v_cvt_pk_bf16_f32 v%d, v%d, v%d' % (P(0, q) + r, b + 2 * r, b + 2 * r + 1))
        a('buffer_store_dwordx4 v[%d:%d], v%d, s[8:11], s33 offen offset:%d sc1' % (P(0, q), P(0, q) + 3, VL16, q * 1024))
    a('s_add_u32 s36, s36, 4')
    a('s_cmp_lt_u32 s36, 8')
    a('s_cbranch_scc1 AT_task')
    a.label('AT_skip')
    if stamps: a('s_memtime s[96:97]')
    a('s_waitcnt vmcnt(0)')
    a('s_barrier')
    a('s_cmp_lg_u32 s20, 0')
    a('s_cbranch_scc1 AT_fin')
    a('v_mov_b32 v7, 1')
    a('v_mov_b32 v5, 0')
    a('s_lshl_b32 s34, s22, 12')
    a('s_lshl_b32 s33, s21, 2')
    a('s_add_u32 s34, s34, s33')
    a('s_add_u32 s34, s34, %d' % WS_FLAG)
    a('s_mov_b64 exec, 1')
    a('buffer_store_dword v7, v5, s[8:11], s34 offen sc1')
    a('s_mov_b64 exec, -1')
    a.label('AT_fin')
    if stamps:
        a('s_mov_b32 s10, s6'); a('s_mov_b32 s11, s7')
        emit_stamps(a, 20, 10, 65 * MB, 24)
    a.label('AT_end')
    a('s_endpgm')
    for p2 in range(2):
        for j in range(1, 9):
            a.label('AT_inv%d_%d' % (p2, j))
            a('s_nop 3')
            regs = ([Z, ML1] if not p2 else [CM(0), CM(1), CL(0), CL(1)])
            for b in regs:
                for r in range(4): a('v_mov_b32 v%d, v6' % (b + r))
            a('s_branch AT_inv%d_%d_ret' % (p2, j))

def gen_probe(a):
    name = 'probe_kernel'
    kernel_begin(a, name)
    a('s_cmp_ge_u32 s2, 256')
    a('s_cbranch_scc1 PR_end')
    a('s_load_dwordx2 s[4:5], s[0:1], %d' % KA_W2)
    a('s_load_dwordx2 s[6:7], s[0:1], %d' % KA_WO)
    a('s_load_dwordx2 s[10:11], s[0:1], %d' % KA_WS)
    a('s_load_dwordx2 s[12:13], s[0:1], %d' % KA_X)
    a('s_load_dwordx2 s[14:15], s[0:1], %d' % KA_BX)
    a('v_lshlrev_b32 v1, 4, v0')
    a('s_waitcnt lgkmcnt(0)')
    srd(a, 20, 4, 5, 7 * MB); srd(a, 24, 6, 7, 2 * MB); srd(a, 28, 10, 11, 200 * MB); srd(a, 32, 12, 13, 4 * MB); srd(a, 36, 14, 15, 4 * MB)
    a('s_and_b32 s40, s2, 7'); a('s_lshr_b32 s41, s2, 3')
    regs = []
    def probe(idx, srdb, offexpr):
        for l in offexpr: a(l)
        for rep in range(2):
            a('s_memtime s[50:51]'); a('s_waitcnt lgkmcnt(0)')
            a('buffer_load_dwordx4 v[4:7], v1, s[%d:%d], s44 offen offset:%d' % (srdb, srdb + 3, rep * 2048))
            a('s_waitcnt vmcnt(0)')
            a('s_memtime s[52:53]'); a('s_waitcnt lgkmcnt(0)')
            a('s_sub_u32 s52, s52, s50')
            a('v_mov_b32 v%d, s52' % (10 + 2 * idx + rep))
    probe(0, 28, ['s_mul_i32 s44, s2, 57344', 's_and_b32 s45, s2, 3', 's_lshr_b32 s44, s2, 3', 's_mul_i32 s44, s44, %d' % HO_MG, 's_lshl_b32 s45, s40, 15', 's_add_u32 s44, s44, s45', 's_add_u32 s44, s44, %d' % WS_HO])
    probe(1, 28, ['s_lshl_b32 s44, s40, 19', 's_lshl_b32 s45, s41, 13', 's_add_u32 s44, s44, s45', 's_add_u32 s44, s44, %d' % (WS_QK + 4 * MB)])
    probe(2, 28, ['s_xor_b32 s44, s40, 3', 's_lshl_b32 s44, s44, 19', 's_lshl_b32 s45, s41, 13', 's_add_u32 s44, s44, s45', 's_add_u32 s44, s44, %d' % (WS_VT + 4096)])
    probe(3, 20, ['s_mul_i32 s44, s2, 28672'])
    probe(4, 24, ['s_lshl_b32 s44, s2, 13'])
    probe(5, 32, ['s_lshl_b32 s44, s2, 14'])
    probe(6, 36, ['s_lshl_b32 s44, s2, 14'])
    probe(7, 28, ['s_lshl_b32 s44, s2, 15', 's_add_u32 s44, s44, %d' % WS_P])
    a('s_lshl_b32 s44, s2, 6')
    a('s_add_u32 s44, s44, %d' % (66 * MB))
    a('v_mov_b32 v2, 0')
    for q in range(4):
        a('buffer_store_dwordx4 v[%d:%d], v2, s[28:31], s44 offen offset:%d' % (10 + 4 * q, 13 + 4 * q, 16 * q))
    a.label('PR_end')
    a('s_endpgm')
    return name, kd(name, 64, 64), (256, 64, 0)

def gen_empty(a):
    name = 'empty_kernel'
    kernel_begin(a, name)
    a('s_endpgm')
    return name, kd(name, 32, 32), (256, 256, 0)

HEADER = open('recurrent_scan__sliding_block__dense_activation_squared_relu__prompt.s.ref').read().split('; Override')[0]

def build(kernels, stamps=False):
    a = Asm()
    infos = []
    for g in kernels:
        infos.append(g(a))
    out = HEADER
    for name, k, (gx, bx, lds) in infos:
        out += '; @launch kernel=%s grid=(%d,1,1) block=(%d,1,1) lds=%d\n' % (name, gx, bx, lds)
    out += '.amdgcn_target "amdgcn-amd-amdhsa--gfx950"\n.text\n'
    out += a.text()
    out += '.section .rodata,"a"\n'
    for name, k, _ in infos:
        out += k
    return out

if __name__ == '__main__':
    stamps = '--stamps' in sys.argv
    outp = [x for x in sys.argv[1:] if not x.startswith('--')][0]
    ks = [gen_ln, lambda a: gen_gemm1(a, stamps), gen_att, lambda a: gen_gemm2(a, stamps)]
    if 'v1' not in OPT:
        ks = [gen_ln, lambda a: gen_gemm1(a, stamps), lambda a: gen_k3(a, stamps)]
    if 'probe' in OPT:
        ks = [gen_ln, lambda a: gen_gemm1(a, stamps), gen_probe]
    if 'emptyfirst' in OPT: ks = [gen_empty] + ks
    if 'emptylast' in OPT: ks = ks + [gen_empty]
    open(outp, 'w').write(build(ks))
```
